```python
import torch

def _softmax(x, axis=-1):
    return torch.softmax(x, dim=axis)
def _gelu(x):
    return torch.nn.functional.gelu(x, approximate="tanh")
def _silu(x):
    return torch.nn.functional.silu(x)
def _sigmoid(x):
    return torch.sigmoid(x)
def _layernorm(x, axis=-1, eps=1e-5):
    m = x.mean(dim=axis, keepdim=True)
    v = x.var(dim=axis, keepdim=True, unbiased=False)
    return (x - m) / torch.sqrt(v + eps)
def _scatter_add(tgt, idx, src, axis=0):
    return tgt.clone().index_add_(axis, idx, src)
def _segment_sum(src, seg, n):
    out = torch.zeros((n,) + src.shape[1:], dtype=src.dtype)
    return out.index_add_(0, seg, src)
def _pad(x, pw):
    flat = tuple(v for pair in reversed(pw) for v in pair)
    return torch.nn.functional.pad(x, flat)

kernel_name = 'sequential_preLN__sliding_block_cached__glu_gated_glu__decode'

def setup_inputs():

    _w = (lambda a: (lambda t: t.to(torch.bfloat16) if t.is_floating_point() else t)(torch.as_tensor(a)))
    def _A_setup():
        B, Sq, D = 2, 1, 512
        Hq, Hkv, Sk, Dh = 32, 8, 32768, 128
        assert Hq % Hkv == 0, (Hq, Hkv)
        return {
            "x": _w((lambda *s: torch.randn(*s, dtype=torch.bfloat16) * 0.05)(B, Sq, D)),
            "k_cache": _w((lambda *s: torch.randn(*s, dtype=torch.bfloat16) * 3.2)(B, Hkv, Sk, Dh)),
            "v_cache": _w((lambda *s: torch.randn(*s, dtype=torch.bfloat16) * 0.4)(B, Hkv, Sk, Dh)),
            "wq": _w((lambda *s: torch.randn(*s, dtype=torch.bfloat16) * 3.2)(D, Hq * Dh) * (D ** -0.5)),
            "wo": _w((lambda *s: torch.randn(*s, dtype=torch.bfloat16) * 0.4)(Hq * Dh, D) * ((Hq * Dh) ** -0.5)),
        }
    _A_in = _A_setup()

    def _B_setup():
        B, S, D, F = 2, 1, 512, 1792
        return {
            "x": _w((lambda *s: torch.randn(*s, dtype=torch.bfloat16) * 0.05)(B, S, D)),
            "w_gate": _w((lambda *s: torch.randn(*s, dtype=torch.bfloat16) * 0.1)(D, F)),
            "w_up": _w((lambda *s: torch.randn(*s, dtype=torch.bfloat16) * 0.05)(D, F)),
            "w_down": _w((lambda *s: torch.randn(*s, dtype=torch.bfloat16) * 0.05)(F, D)),
        }
    _B_in = _B_setup()

    return {
        "A_x": _A_in["x"],
        "A_k_cache": _A_in["k_cache"],
        "A_v_cache": _A_in["v_cache"],
        "A_wq": _A_in["wq"],
        "A_wo": _A_in["wo"],
        "B_x": _B_in["x"],
        "B_w_gate": _B_in["w_gate"],
        "B_w_up": _B_in["w_up"],
        "B_w_down": _B_in["w_down"],
    }

def reference(A_x, A_k_cache, A_v_cache, A_wq, A_wo, B_x, B_w_gate, B_w_up, B_w_down):
    def _A_ref(x, k_cache, v_cache, wq, wo):
        B, Sq, D = x.shape
        Hq, Dh = 32, 128
        Hkv, Sk = k_cache.shape[1], k_cache.shape[2]
        W = min(4096, max(256, Sk // 4))
        rep = Hq // Hkv
        q = (lambda x, *d: x.permute(*d))((x @ wq).reshape(B, Sq, Hq, Dh), 0, 2, 1, 3)
        k = (lambda x, n, axis: torch.repeat_interleave(x, n, dim=axis))(k_cache[:, :, Sk - W:, :], rep, axis=1)
        v = (lambda x, n, axis: torch.repeat_interleave(x, n, dim=axis))(v_cache[:, :, Sk - W:, :], rep, axis=1)
        scores = torch.einsum("bhqd,bhkd->bhqk", q, k) * (Dh ** -0.5)
        p = _softmax(scores, axis=-1)
        o = torch.einsum("bhqk,bhkd->bhqd", p, v)
        return (lambda x, *d: x.permute(*d))(o, 0, 2, 1, 3).reshape(B, Sq, Hq * Dh) @ wo

    def _B_ref(x, w_gate, w_up, w_down):
        g = torch.einsum("bsd,df->bsf", x, w_gate)
        u = torch.einsum("bsd,df->bsf", x, w_up)
        h = _sigmoid(g) * u
        return torch.einsum("bsf,fd->bsd", h, w_down)

    x = A_x
    h = x + _A_ref(_layernorm(x, axis=-1), A_k_cache, A_v_cache, A_wq, A_wo)
    h2 = h + _B_ref(_layernorm(h, axis=-1), B_w_gate, B_w_up, B_w_down)
    return h2
```

```python
import sys
L = []
def e(s): L.append("    " + s)
def lab(s): L.append(s + ":")
def nop(n=1): e(f"s_nop {n}")

WS_Q  = 0x0
WS_ML = 0x8000
WS_OP = 0x10000
WS_AO = 0x90000
WS_DP = 0xA0000

def bf16r(v):
    e(f"v_cvt_pk_bf16_f32 v{v}, v{v}, v{v}")
    e(f"v_lshlrev_b32 v{v}, 16, v{v}")

def dpp(op, v, sh):
    nop(1)
    e(f"{op}_dpp v{v}, v{v}, v{v} row_ror:{sh} row_mask:0xf bank_mask:0xf")

def swap_add(v, t, which):
    e(f"v_mov_b32 v{t}, v{v}")
    nop(1)
    e(f"v_permlane{which}_swap_b32 v{v}, v{t}")
    nop(1)
    e(f"v_add_f32 v{v}, v{v}, v{t}")

def allreduce_sum(v, t):
    for sh in (1, 2, 4, 8): dpp("v_add_f32", v, sh)
    swap_add(v, t, 16); swap_add(v, t, 32)

def reduce_list(accs, rors, t):
    for sh in rors:
        nop(1)
        for a in accs:
            e(f"v_add_f32_dpp v{a}, v{a}, v{a} row_ror:{sh} row_mask:0xf bank_mask:0xf")
    for which in (16, 32):
        for a in accs:
            swap_add(a, t, which)

def header(name, n):
    L.append(f".globl {name}")
    L.append(".p2align 8")
    L.append(f".type {name},@function")
    lab(name)
    e(f"s_cmp_ge_u32 s2, {n}")
    e(f"s_cbranch_scc1 {name}_end")

def footer(name):
    lab(f"{name}_end")
    e("s_endpgm")

def unpack(src, lo, hi):
    e(f"v_lshlrev_b32 v{lo}, 16, v{src}")
    e(f"v_and_b32 v{hi}, 0xffff0000, v{src}")

def layernorm_wave(xs, t0, t1, t2):
    e(f"v_add_f32 v{t0}, v{xs[0]}, v{xs[1]}")
    for k in range(2, 8): e(f"v_add_f32 v{t0}, v{t0}, v{xs[k]}")
    allreduce_sum(t0, t1)
    e(f"v_mul_f32 v{t0}, 0x3b000000, v{t0}")
    e(f"v_sub_f32 v{t1}, v{xs[0]}, v{t0}")
    e(f"v_mul_f32 v{t2}, v{t1}, v{t1}")
    for k in range(1, 8):
        e(f"v_sub_f32 v{t1}, v{xs[k]}, v{t0}")
        e(f"v_fmac_f32 v{t2}, v{t1}, v{t1}")
    allreduce_sum(t2, t1)
    e(f"v_mul_f32 v{t2}, 0x3b000000, v{t2}")
    bf16r(t2)
    e(f"v_add_f32 v{t2}, 0x3727c5ac, v{t2}")
    bf16r(t2)
    e(f"v_sqrt_f32 v{t2}, v{t2}")
    nop(0)
    bf16r(t2)
    e(f"v_rcp_f32 v{t2}, v{t2}")
    bf16r(t0)
    for k in range(8):
        e(f"v_sub_f32 v{xs[k]}, v{xs[k]}, v{t0}")
        bf16r(xs[k])
        e(f"v_mul_f32 v{xs[k]}, v{xs[k]}, v{t2}")
        bf16r(xs[k])

def ln_to_lds(xs, vaddr):
    for k in range(8):
        e(f"ds_write_b32 v{vaddr}, v{xs[k]} offset:{k*8}")

def k1():
    n = "k1_qproj_kernel"
    header(n, 128)
    e("s_load_dwordx2 s[4:5], s[0:1], 0")
    e("s_load_dwordx2 s[6:7], s[0:1], 24")
    e("s_load_dwordx2 s[8:9], s[0:1], 88")
    e("v_and_b32 v1, 63, v0")
    e("v_lshrrev_b32 v2, 6, v0")
    e("v_and_b32 v3, 3, v0")
    e("v_lshrrev_b32 v4, 2, v0")
    e("s_lshl_b32 s3, s2, 6")
    e("v_lshlrev_b32 v5, 13, v4")
    e("v_lshl_add_u32 v5, v3, 4, v5")
    e("v_add_u32 v5, s3, v5")
    e("v_and_b32 v6, 1, v2")
    e("v_lshlrev_b32 v7, 10, v6")
    e("v_lshl_add_u32 v7, v1, 4, v7")
    e("s_waitcnt lgkmcnt(0)")
    e("global_load_dwordx4 v[8:11], v7, s[4:5]")
    for i in range(8):
        if i: e(f"v_add_u32 v5, 0x80000, v5")
        e(f"global_load_dwordx4 v[{32+4*i}:{35+4*i}], v5, s[6:7]")
    e("s_waitcnt vmcnt(8)")
    xs = list(range(12, 20))
    for k in range(4): unpack(8+k, 12+2*k, 13+2*k)
    layernorm_wave(xs, 20, 21, 22)
    e("v_lshlrev_b32 v23, 6, v1")
    e("v_lshl_add_u32 v23, v6, 2, v23")
    ln_to_lds(xs, 23)
    e("s_waitcnt lgkmcnt(0)")
    e("s_barrier")
    e("v_lshlrev_b32 v23, 3, v4")
    for i in range(8):
        e(f"ds_read_b64 v[{64+2*i}:{65+2*i}], v23 offset:{512*i}")
    accs = list(range(80, 96))
    for a in accs: e(f"v_mov_b32 v{a}, 0")
    e("s_waitcnt lgkmcnt(0)")
    for i in range(8):
        e(f"s_waitcnt vmcnt({7-i})")
        for k in range(4):
            unpack(32+4*i+k, 24, 25)
            e(f"v_fmac_f32 v{80+2*k}, v{64+2*i}, v24")
            e(f"v_fmac_f32 v{81+2*k}, v{64+2*i}, v25")
            e(f"v_fmac_f32 v{88+2*k}, v{65+2*i}, v24")
            e(f"v_fmac_f32 v{89+2*k}, v{65+2*i}, v25")
    reduce_list(accs, (4, 8), 24)
    e("v_lshlrev_b32 v23, 8, v2")
    e("v_lshl_add_u32 v23, v3, 6, v23")
    e("v_add_u32 v23, 4096, v23")
    e("v_cmp_gt_u32 vcc, 4, v1")
    e("s_and_saveexec_b64 s[10:11], vcc")
    for k in range(4):
        e(f"ds_write_b128 v23, v[{80+4*k}:{83+4*k}] offset:{16*k}")
    e("s_mov_b64 exec, s[10:11]")
    e("s_waitcnt lgkmcnt(0)")
    e("s_barrier")
    e("v_cmp_gt_u32 vcc, 64, v0")
    e("s_and_saveexec_b64 s[10:11], vcc")
    e(f"s_cbranch_execz {n}_end")
    e("v_lshrrev_b32 v24, 5, v0")
    e("v_and_b32 v25, 31, v0")
    e("v_lshrrev_b32 v26, 3, v25")
    e("v_and_b32 v27, 7, v25")
    e("v_lshlrev_b32 v28, 6, v26")
    e("v_lshl_add_u32 v28, v24, 5, v28")
    e("v_lshl_add_u32 v28, v27, 2, v28")
    e("v_add_u32 v28, 4096, v28")
    for w in range(4): e(f"ds_read_b32 v{30+w}, v28 offset:{256*w}")
    e("s_waitcnt lgkmcnt(0)")
    e("v_add_f32 v30, v30, v31")
    e("v_add_f32 v32, v32, v33")
    e("v_add_f32 v30, v30, v32")
    e("v_cvt_pk_bf16_f32 v30, v30, v30")
    e("v_lshlrev_b32 v28, 13, v24")
    e("v_lshl_add_u32 v28, v25, 1, v28")
    e("v_add_u32 v28, s3, v28")
    e(f"global_store_short v28, v30, s[8:9] offset:{WS_Q}")
    footer(n)

def k2():
    n = "k2_attn_kernel"
    ACC, PB, ML = 0, 32768, 36864
    header(n, 256)
    e("s_load_dwordx2 s[4:5], s[0:1], 8")
    e("s_load_dwordx2 s[6:7], s[0:1], 16")
    e("s_load_dwordx2 s[8:9], s[0:1], 88")
    e("s_lshr_b32 s14, s2, 4")
    e("s_and_b32 s15, s2, 15")
    e("s_lshl_b32 s16, s14, 23")
    e("s_lshl_b32 s17, s15, 16")
    e("s_add_u32 s16, s16, s17")
    e(f"s_add_u32 s16, s16, {28672*256}")
    e("v_and_b32 v1, 63, v0")
    e("v_lshrrev_b32 v2, 6, v0")
    e("v_and_b32 v11, 15, v1")
    e("v_lshrrev_b32 v12, 4, v1")
    e("v_lshlrev_b32 v3, 14, v2")
    e("v_lshl_add_u32 v3, v11, 8, v3")
    e("v_lshl_add_u32 v3, v12, 4, v3")
    e("v_add_u32 v4, 4096, v3")
    e("v_add_u32 v5, 8192, v3")
    e("v_add_u32 v6, 12288, v3")
    e("v_lshlrev_b32 v7, 14, v2")
    e("v_lshl_add_u32 v7, v12, 8, v7")
    e("v_lshl_add_u32 v7, v11, 4, v7")
    e("v_add_u32 v8, 4096, v7")
    e("v_add_u32 v9, 8192, v7")
    e("v_add_u32 v10, 12288, v7")
    e("s_waitcnt lgkmcnt(0)")
    e("s_add_u32 s10, s4, s16")
    e("s_addc_u32 s11, s5, 0")
    e("s_add_u32 s12, s6, s16")
    e("s_addc_u32 s13, s7, 0")
    for t in range(4):
        for i in range(4):
            r = 16 + (t*4+i)*4
            e(f"global_load_dwordx4 v[{r}:{r+3}], v{3+t}, s[10:11] offset:{64*i}")
    for r in range(144, 160): e(f"v_mov_b32 v{r}, 0")
    e("s_lshl_b32 s18, s14, 10")
    e("v_lshlrev_b32 v13, 8, v11")
    e("v_lshl_add_u32 v13, v12, 4, v13")
    e("v_add_u32 v13, s18, v13")
    e("v_cmp_gt_u32 vcc, 4, v11")
    e("s_and_saveexec_b64 s[20:21], vcc")
    for i in range(4):
        e(f"global_load_dwordx4 v[{144+4*i}:{147+4*i}], v13, s[8:9] offset:{WS_Q+64*i}")
    e("s_mov_b64 exec, s[20:21]")
    for g in range(4):
        for i in range(4):
            r = 80 + (g*4+i)*4
            e(f"global_load_dwordx4 v[{r}:{r+3}], v{7+g}, s[12:13] offset:{1024*i}")
    for r in range(160, 176): e(f"v_mov_b32 v{r}, 0")
    e("s_waitcnt vmcnt(16)")
    nop(1)
    for t in range(4):
        for i in range(4):
            r = 16 + (t*4+i)*4
            e(f"v_mfma_f32_16x16x32_bf16 v[{160+4*t}:{163+4*t}], v[{144+4*i}:{147+4*i}], v[{r}:{r+3}], v[{160+4*t}:{163+4*t}]")
    nop(15)
    for r in range(160, 176):
        bf16r(r)
        e(f"v_mul_f32 v{r}, 0x3db504f3, v{r}")
        bf16r(r)
        e(f"v_mul_f32 v{r}, 0x3fb8aa3b, v{r}")
    for h in range(4):
        e(f"v_max_f32 v{208+h}, v{160+h}, v{164+h}")
        e(f"v_max_f32 v{216}, v{168+h}, v{172+h}")
        e(f"v_max_f32 v{208+h}, v{208+h}, v216")
    for sh in (1, 2, 4, 8):
        nop(1)
        for h in range(4):
            e(f"v_max_f32_dpp v{208+h}, v{208+h}, v{208+h} row_ror:{sh} row_mask:0xf bank_mask:0xf")
    for t in range(4):
        for h in range(4):
            r = 160+4*t+h
            e(f"v_sub_f32 v{r}, v{r}, v{208+h}")
            e(f"v_exp_f32 v{r}, v{r}")
    nop(0)
    for h in range(4):
        e(f"v_add_f32 v{212+h}, v{160+h}, v{164+h}")
        e(f"v_add_f32 v216, v{168+h}, v{172+h}")
        e(f"v_add_f32 v{212+h}, v{212+h}, v216")
    for sh in (1, 2, 4, 8):
        nop(1)
        for h in range(4):
            e(f"v_add_f32_dpp v{212+h}, v{212+h}, v{212+h} row_ror:{sh} row_mask:0xf bank_mask:0xf")
    e("v_lshlrev_b32 v13, 10, v2")
    e("v_lshl_add_u32 v14, v1, 4, v13")
    e(f"v_add_u32 v14, {PB}, v14")
    e("v_cmp_gt_u32 vcc, 16, v1")
    e("s_and_saveexec_b64 s[20:21], vcc")
    for t in range(4):
        e(f"ds_write_b128 v14, v[{160+4*t}:{163+4*t}] offset:{256*t}")
    e("v_cmp_eq_u32 vcc, 0, v1")
    e("s_and_b64 exec, exec, vcc")
    e("v_lshlrev_b32 v15, 5, v2")
    e(f"v_add_u32 v15, {ML}, v15")
    e("ds_write_b128 v15, v[208:211]")
    e("ds_write_b128 v15, v[212:215] offset:16")
    e("s_mov_b64 exec, s[20:21]")
    e("v_lshl_add_u32 v14, v12, 4, v13")
    e(f"v_add_u32 v14, {PB}, v14")
    for i in range(16):
        e(f"ds_read_b128 v[{16+4*i}:{19+4*i}], v14 offset:{64*i}")
    for r in range(176, 208): e(f"v_mov_b32 v{r}, 0")
    e("s_waitcnt lgkmcnt(0)")
    for i in range(16):
        e(f"s_waitcnt vmcnt({15-i})")
        for k in range(4):
            unpack(80+4*i+k, 216+2*k, 217+2*k)
        for h in range(4):
            for j in range(8):
                e(f"v_fmac_f32 v{176+8*h+j}, v{16+4*i+h}, v{216+j}")
    e("v_lshlrev_b32 v14, 2, v2")
    e("v_add_u32 v14, v14, v12")
    e("v_lshlrev_b32 v14, 11, v14")
    e("v_lshl_add_u32 v14, v11, 5, v14")
    for h in range(4):
        e(f"ds_write_b128 v14, v[{176+8*h}:{179+8*h}] offset:{512*h}")
        e(f"ds_write_b128 v14, v[{180+8*h}:{183+8*h}] offset:{512*h+16}")
    e("s_waitcnt lgkmcnt(0)")
    e("s_barrier")
    e("v_lshlrev_b32 v14, 9, v2")
    e("v_lshl_add_u32 v14, v1, 3, v14")
    for p in range(16):
        e(f"ds_read_b64 v[{16+2*p}:{17+2*p}], v14 offset:{2048*p}")
    e("v_lshlrev_b32 v15, 2, v2")
    for w in range(4):
        e(f"ds_read_b32 v{48+w}, v15 offset:{ML+32*w}")
        e(f"ds_read_b32 v{52+w}, v15 offset:{ML+32*w+16}")
    e("s_waitcnt lgkmcnt(0)")
    e("v_max_f32 v56, v48, v49")
    e("v_max_f32 v57, v50, v51")
    e("v_max_f32 v56, v56, v57")
    for w in range(4):
        e(f"v_sub_f32 v{48+w}, v{48+w}, v56")
        e(f"v_exp_f32 v{48+w}, v{48+w}")
    nop(0)
    e("v_mul_f32 v57, v48, v52")
    for w in range(1, 4): e(f"v_fmac_f32 v57, v{48+w}, v{52+w}")
    e("v_mov_b32 v58, 0")
    e("v_mov_b32 v59, 0")
    for w in range(4):
        for rg in range(4):
            p = w*4+rg
            e(f"v_fmac_f32 v58, v{48+w}, v{16+2*p}")
            e(f"v_fmac_f32 v59, v{48+w}, v{17+2*p}")
    e("s_lshl_b32 s18, s14, 6")
    e("s_add_u32 s18, s18, s15")
    e("v_lshlrev_b32 v14, 4, v2")
    e("v_add_u32 v14, s18, v14")
    e("v_lshlrev_b32 v15, 9, v14")
    e("v_lshl_add_u32 v15, v1, 3, v15")
    e(f"v_add_u32 v15, {WS_OP}, v15")
    e("global_store_dwordx2 v15, v[58:59], s[8:9]")
    e("v_lshlrev_b32 v15, 3, v14")
    e(f"v_add_u32 v15, {WS_ML}, v15")
    e("v_cmp_eq_u32 vcc, 0, v1")
    e("s_and_saveexec_b64 s[20:21], vcc")
    e(f"global_store_dwordx2 v15, v[56:57], s[8:9] offset:0")
    footer(n)

def k3():
    n = "k3_oproj_kernel"
    header(n, 256)
    e("s_load_dwordx2 s[6:7], s[0:1], 32")
    e("s_load_dwordx2 s[8:9], s[0:1], 88")
    e("s_lshr_b32 s14, s2, 4")
    e("s_and_b32 s15, s2, 15")
    e("v_and_b32 v1, 63, v0")
    e("v_lshrrev_b32 v2, 6, v0")
    e("v_and_b32 v3, 3, v0")
    e("v_lshrrev_b32 v4, 2, v0")
    e("s_lshl_b32 s16, s14, 18")
    e("s_lshl_b32 s17, s15, 6")
    e("s_add_u32 s16, s16, s17")
    e("v_lshlrev_b32 v5, 10, v4")
    e("v_lshl_add_u32 v5, v3, 4, v5")
    e("v_add_u32 v5, s16, v5")
    e("s_waitcnt lgkmcnt(0)")
    for i in range(4):
        if i: e("v_add_u32 v5, 0x10000, v5")
        e(f"global_load_dwordx4 v[{16+4*i}:{19+4*i}], v5, s[6:7]")
    e("v_lshrrev_b32 v6, 7, v0")
    e("s_lshl_b32 s18, s14, 1")
    e("v_add_u32 v6, s18, v6")
    e("v_and_b32 v7, 127, v0")
    for b in range(2):
        e(f"v_lshlrev_b32 v8, 7, v6")
        e(f"v_add_u32 v8, {WS_ML + b*4096}, v8")
        for k in range(8):
            e(f"global_load_dwordx4 v[{32+4*k}:{35+4*k}], v8, s[8:9] offset:{16*k}")
        e(f"v_lshlrev_b32 v9, 13, v6")
        e(f"v_lshl_add_u32 v9, v7, 2, v9")
        e(f"v_add_u32 v9, {WS_OP + b*32*8192}, v9")
        e(f"v_add_u32 v10, 4096, v9")
        for c in range(16):
            e(f"global_load_dword v{64+c}, v{9 if c < 8 else 10}, s[8:9] offset:{512*(c%8)}")
        e("s_waitcnt vmcnt(16)")
        e("v_max_f32 v80, v32, v34")
        for c in range(2, 16): e(f"v_max_f32 v80, v80, v{32+2*c}")
        for c in range(16):
            e(f"v_sub_f32 v{32+2*c}, v{32+2*c}, v80")
            e(f"v_exp_f32 v{32+2*c}, v{32+2*c}")
        nop(0)
        e("v_mul_f32 v81, v32, v33")
        for c in range(1, 16): e(f"v_fmac_f32 v81, v{32+2*c}, v{33+2*c}")
        e("v_rcp_f32 v81, v81")
        e("s_waitcnt vmcnt(0)")
        e("v_mul_f32 v82, v32, v64")
        for c in range(1, 16): e(f"v_fmac_f32 v82, v{32+2*c}, v{64+c}")
        e("v_mul_f32 v82, v82, v81")
        bf16r(82)
        e("v_lshlrev_b32 v11, 3, v0")
        e(f"ds_write_b32 v11, v82 offset:{4*b}")
    e("s_waitcnt lgkmcnt(0)")
    e("s_barrier")
    e("v_lshlrev_b32 v11, 3, v4")
    for i in range(4):
        e(f"ds_read_b64 v[{64+2*i}:{65+2*i}], v11 offset:{512*i}")
    accs = list(range(80, 96))
    for a in accs: e(f"v_mov_b32 v{a}, 0")
    e("s_waitcnt lgkmcnt(0)")
    for i in range(4):
        for k in range(4):
            unpack(16+4*i+k, 24+8, 25+8)
            e(f"v_fmac_f32 v{80+2*k}, v{64+2*i}, v32")
            e(f"v_fmac_f32 v{81+2*k}, v{64+2*i}, v33")
            e(f"v_fmac_f32 v{88+2*k}, v{65+2*i}, v32")
            e(f"v_fmac_f32 v{89+2*k}, v{65+2*i}, v33")
    reduce_list(accs, (4, 8), 34)
    e("v_lshlrev_b32 v23, 8, v2")
    e("v_lshl_add_u32 v23, v3, 6, v23")
    e("v_add_u32 v23, 4096, v23")
    e("v_cmp_gt_u32 vcc, 4, v1")
    e("s_and_saveexec_b64 s[10:11], vcc")
    for k in range(4):
        e(f"ds_write_b128 v23, v[{80+4*k}:{83+4*k}] offset:{16*k}")
    e("s_mov_b64 exec, s[10:11]")
    e("s_waitcnt lgkmcnt(0)")
    e("s_barrier")
    e("v_cmp_gt_u32 vcc, 64, v0")
    e("s_and_saveexec_b64 s[10:11], vcc")
    e(f"s_cbranch_execz {n}_end")
    e("v_lshrrev_b32 v24, 5, v0")
    e("v_and_b32 v25, 31, v0")
    e("v_lshrrev_b32 v26, 3, v25")
    e("v_and_b32 v27, 7, v25")
    e("v_lshlrev_b32 v28, 6, v26")
    e("v_lshl_add_u32 v28, v24, 5, v28")
    e("v_lshl_add_u32 v28, v27, 2, v28")
    e("v_add_u32 v28, 4096, v28")
    for w in range(4): e(f"ds_read_b32 v{30+w}, v28 offset:{256*w}")
    e("s_waitcnt lgkmcnt(0)")
    e("v_add_f32 v30, v30, v31")
    e("v_add_f32 v32, v32, v33")
    e("v_add_f32 v30, v30, v32")
    e("s_lshl_b32 s16, s14, 12")
    e("s_lshl_b32 s17, s15, 7")
    e("s_add_u32 s16, s16, s17")
    e(f"s_add_u32 s16, s16, {WS_AO}")
    e("v_lshlrev_b32 v28, 11, v24")
    e("v_lshl_add_u32 v28, v25, 2, v28")
    e("v_add_u32 v28, s16, v28")
    e("global_store_dword v28, v30, s[8:9]")
    footer(n)

def k4():
    n = "k4_mlp_kernel"
    header(n, 112)
    e("s_load_dwordx2 s[4:5], s[0:1], 0")
    e("s_load_dwordx2 s[6:7], s[0:1], 48")
    e("s_load_dwordx2 s[10:11], s[0:1], 56")
    e("s_load_dwordx2 s[12:13], s[0:1], 64")
    e("s_load_dwordx2 s[8:9], s[0:1], 88")
    e("v_and_b32 v1, 63, v0")
    e("v_lshrrev_b32 v2, 6, v0")
    e("v_and_b32 v3, 1, v0")
    e("v_lshrrev_b32 v4, 1, v0")
    e("s_mov_b32 s3, 3584")
    e("v_mul_lo_u32 v5, v4, s3")
    e("v_lshl_add_u32 v5, v3, 4, v5")
    e("s_lshl_b32 s16, s2, 5")
    e("v_add_u32 v5, s16, v5")
    e("v_and_b32 v6, 1, v2")
    e("s_waitcnt lgkmcnt(0)")
    for i in range(4):
        if i: e(f"v_add_u32 v5, {128*3584}, v5")
        e(f"global_load_dwordx4 v[{96+4*i}:{99+4*i}], v5, s[6:7]")
        e(f"global_load_dwordx4 v[{112+4*i}:{115+4*i}], v5, s[10:11]")
    e("s_lshl_b32 s17, s2, 14")
    e("v_lshlrev_b32 v7, 2, v0")
    e("v_add_u32 v7, s17, v7")
    e("v_add_u32 v8, 4096, v7")
    e("v_add_u32 v9, 8192, v7")
    e("v_add_u32 v10, 12288, v7")
    for i in range(16):
        e(f"global_load_dword v{128+i}, v{7+i//4}, s[12:13] offset:{1024*(i%4)}")
    e("v_lshlrev_b32 v11, 10, v6")
    e("v_lshl_add_u32 v11, v1, 4, v11")
    e("global_load_dwordx4 v[12:15], v11, s[4:5]")
    e("v_lshlrev_b32 v11, 11, v6")
    e("v_lshl_add_u32 v11, v1, 5, v11")
    e(f"v_add_u32 v11, {WS_AO}, v11")
    for s in range(16):
        if s: e("v_add_u32 v11, 4096, v11")
        e(f"global_load_dwordx4 v[{32+8*(s%4)}:{35+8*(s%4)}], v11, s[8:9]")
        e(f"global_load_dwordx4 v[{36+8*(s%4)}:{39+8*(s%4)}], v11, s[8:9] offset:16")
        if s % 4 == 3:
            e("s_waitcnt vmcnt(0)")
            for k in range(8):
                if s == 3:
                    e(f"v_add_f32 v{24+k}, v{32+k}, v{40+k}")
                else:
                    e(f"v_add_f32 v{24+k}, v{24+k}, v{32+k}")
                    e(f"v_add_f32 v{24+k}, v{24+k}, v{40+k}")
                e(f"v_add_f32 v{48+k}, v{48+k}, v{56+k}")
                e(f"v_add_f32 v{24+k}, v{24+k}, v{48+k}")
    for k in range(4): unpack(12+k, 16+2*k, 17+2*k)
    xs = list(range(16, 24))
    for k in range(8):
        bf16r(24+k)
        e(f"v_add_f32 v{16+k}, v{16+k}, v{24+k}")
        bf16r(16+k)
    layernorm_wave(xs, 24, 25, 26)
    e("v_lshlrev_b32 v27, 6, v1")
    e("v_lshl_add_u32 v27, v6, 2, v27")
    ln_to_lds(xs, 27)
    e("s_waitcnt lgkmcnt(0)")
    e("s_barrier")
    e("v_lshlrev_b32 v27, 3, v4")
    for i in range(4):
        e(f"ds_read_b64 v[{64+2*i}:{65+2*i}], v27 offset:{1024*i}")
    accs = list(range(144, 176))
    for a in accs: e(f"v_mov_b32 v{a}, 0")
    e("s_waitcnt lgkmcnt(0)")
    for i in range(4):
        for m in range(2):
            for k in range(4):
                unpack(96+16*m+4*i+k, 28, 29)
                e(f"v_fmac_f32 v{144+16*m+2*k}, v{64+2*i}, v28")
                e(f"v_fmac_f32 v{145+16*m+2*k}, v{64+2*i}, v29")
                e(f"v_fmac_f32 v{152+16*m+2*k}, v{65+2*i}, v28")
                e(f"v_fmac_f32 v{153+16*m+2*k}, v{65+2*i}, v29")
    reduce_list(accs, (2, 4, 8), 28)
    e("v_lshlrev_b32 v27, 8, v2")
    e("v_lshl_add_u32 v27, v3, 7, v27")
    e("v_add_u32 v27, 4096, v27")
    e("v_cmp_gt_u32 vcc, 2, v1")
    e("s_and_saveexec_b64 s[14:15], vcc")
    for k in range(8):
        e(f"ds_write_b128 v27, v[{144+4*k}:{147+4*k}] offset:{16*k}")
    e("s_mov_b64 exec, s[14:15]")
    e("s_waitcnt lgkmcnt(0)")
    e("s_barrier")
    e("v_cmp_gt_u32 vcc, 32, v0")
    e("s_and_saveexec_b64 s[14:15], vcc")
    e("v_lshrrev_b32 v24, 4, v0")
    e("v_and_b32 v25, 15, v0")
    e("v_lshrrev_b32 v26, 3, v25")
    e("v_and_b32 v27, 7, v25")
    e("v_lshlrev_b32 v28, 7, v26")
    e("v_lshl_add_u32 v28, v24, 5, v28")
    e("v_lshl_add_u32 v28, v27, 2, v28")
    e("v_add_u32 v28, 4096, v28")
    for w in range(4):
        e(f"ds_read_b32 v{30+w}, v28 offset:{256*w}")
        e(f"ds_read_b32 v{34+w}, v28 offset:{256*w+64}")
    e("s_waitcnt lgkmcnt(0)")
    e("v_add_f32 v30, v30, v31")
    e("v_add_f32 v32, v32, v33")
    e("v_add_f32 v30, v30, v32")
    e("v_add_f32 v34, v34, v35")
    e("v_add_f32 v36, v36, v37")
    e("v_add_f32 v34, v34, v36")
    bf16r(30); bf16r(34)
    e("v_mul_f32 v30, 0xbfb8aa3b, v30")
    e("v_exp_f32 v30, v30")
    nop(0)
    e("v_add_f32 v30, 1.0, v30")
    e("v_rcp_f32 v30, v30")
    nop(0)
    bf16r(30)
    e("v_mul_f32 v30, v30, v34")
    bf16r(30)
    e("v_lshlrev_b32 v28, 3, v25")
    e("v_lshl_add_u32 v28, v24, 2, v28")
    e("ds_write_b32 v28, v30 offset:5120")
    e("s_mov_b64 exec, s[14:15]")
    e("s_waitcnt lgkmcnt(0)")
    e("s_barrier")
    e("v_mov_b32 v27, 0")
    for i in range(16):
        e(f"ds_read_b64 v[{32+2*i}:{33+2*i}], v27 offset:{5120+8*i}")
    for a in range(24, 28): e(f"v_mov_b32 v{a}, 0")
    e("s_waitcnt lgkmcnt(0)")
    for i in range(16):
        unpack(128+i, 28, 29)
        e(f"v_fmac_f32 v24, v{32+2*i}, v28")
        e(f"v_fmac_f32 v25, v{32+2*i}, v29")
        e(f"v_fmac_f32 v26, v{33+2*i}, v28")
        e(f"v_fmac_f32 v27, v{33+2*i}, v29")
    e("s_lshl_b32 s16, s2, 12")
    e(f"s_add_u32 s16, s16, {WS_DP}")
    e("v_lshlrev_b32 v28, 3, v0")
    e("v_add_u32 v28, s16, v28")
    e("global_store_dwordx2 v28, v[24:25], s[8:9]")
    e("global_store_dwordx2 v28, v[26:27], s[8:9] offset:2048")
    footer(n)

def k5():
    n = "k5_final_kernel"
    header(n, 16)
    e("s_load_dwordx2 s[4:5], s[0:1], 0")
    e("s_load_dwordx2 s[6:7], s[0:1], 72")
    e("s_load_dwordx2 s[8:9], s[0:1], 88")
    e("v_and_b32 v1, 63, v0")
    e("v_lshrrev_b32 v2, 6, v0")
    e("s_lshl_b32 s3, s2, 6")
    e("v_add_u32 v3, s3, v1")
    e("s_mov_b32 s10, 114688")
    e("v_mul_lo_u32 v4, v2, s10")
    e("v_lshl_add_u32 v4, v3, 2, v4")
    e(f"v_add_u32 v4, {WS_DP}, v4")
    e("v_lshlrev_b32 v5, 14, v2")
    e("v_lshl_add_u32 v5, v3, 2, v5")
    e(f"v_add_u32 v5, {WS_AO}, v5")
    e("s_waitcnt lgkmcnt(0)")
    for i in range(28):
        if i and i % 1 == 0: pass
        e(f"global_load_dword v{16+i}, v4, s[8:9]")
        e("v_add_u32 v4, 4096, v4")
    for i in range(4):
        e(f"global_load_dword v{44+i}, v5, s[8:9]")
        e("v_add_u32 v5, 4096, v5")
    e("v_lshlrev_b32 v6, 1, v3")
    e("global_load_ushort v48, v6, s[4:5]")
    e("s_waitcnt vmcnt(0)")
    for i in range(1, 28): e(f"v_add_f32 v16, v16, v{16+i}")
    for i in range(1, 4): e(f"v_add_f32 v44, v44, v{44+i}")
    e("v_lshlrev_b32 v7, 3, v0")
    e("ds_write_b64 v7, v[16:17]")
    L.pop()
    e("v_mov_b32 v17, v44")
    e("ds_write_b64 v7, v[16:17]")
    e("s_waitcnt lgkmcnt(0)")
    e("s_barrier")
    e("v_cmp_gt_u32 vcc, 64, v0")
    e("s_and_saveexec_b64 s[10:11], vcc")
    e(f"s_cbranch_execz {n}_end")
    for w in range(4): e(f"ds_read_b64 v[{20+2*w}:{21+2*w}], v7 offset:{512*w}")
    e("s_waitcnt lgkmcnt(0)")
    e("v_add_f32 v20, v20, v22")
    e("v_add_f32 v24, v24, v26")
    e("v_add_f32 v20, v20, v24")
    e("v_add_f32 v21, v21, v23")
    e("v_add_f32 v25, v25, v27")
    e("v_add_f32 v21, v21, v25")
    bf16r(21)
    e("v_lshlrev_b32 v48, 16, v48")
    e("v_add_f32 v21, v21, v48")
    bf16r(21)
    bf16r(20)
    e("v_add_f32 v20, v20, v21")
    e("v_cvt_pk_bf16_f32 v20, v20, v20")
    e("global_store_short v6, v20, s[6:7]")
    footer(n)

hdr = open('sequential_preLN__sliding_block_cached__glu_gated_glu__decode.s.ref').read().split('\n')
top = [l for l in hdr if l.startswith(';') and '@launch' not in l]
out = top[:]
out.append("; @launch kernel=k1_qproj_kernel grid=(128,1,1) block=(256,1,1) lds=8192")
out.append("; @launch kernel=k2_attn_kernel grid=(256,1,1) block=(256,1,1) lds=37120")
out.append("; @launch kernel=k3_oproj_kernel grid=(256,1,1) block=(256,1,1) lds=8192")
out.append("; @launch kernel=k4_mlp_kernel grid=(112,1,1) block=(256,1,1) lds=8192")
out.append("; @launch kernel=k5_final_kernel grid=(16,1,1) block=(256,1,1) lds=2048")
out.append('.amdgcn_target "amdgcn-amd-amdhsa--gfx950"')
out.append(".text")
for f in (k1, k2, k3, k4, k5): f()
out += L
out.append('.section .rodata,"a"')
for name in ("k1_qproj_kernel","k2_attn_kernel","k3_oproj_kernel","k4_mlp_kernel","k5_final_kernel"):
    out += [".p2align 6", f".amdhsa_kernel {name}", "  .amdhsa_next_free_vgpr 256", "  .amdhsa_next_free_sgpr 102",
            "  .amdhsa_accum_offset 256", "  .amdhsa_group_segment_fixed_size 0", "  .amdhsa_kernarg_size 96",
            "  .amdhsa_user_sgpr_count 2", "  .amdhsa_user_sgpr_kernarg_segment_ptr 1",
            "  .amdhsa_system_sgpr_workgroup_id_x 1", ".end_amdhsa_kernel"]
open('sequential_preLN__sliding_block_cached__glu_gated_glu__decode.s','w').write('\n'.join(out)+'\n')
```

```python
import sys
L = []
def e(s): L.append("    " + s)
def lab(s): L.append(s + ":")
def nop(n=1): e(f"s_nop {n}")

WS_Q  = 0x0
WS_ML = 0x8000
WS_OP = 0x10000
WS_AO = 0x90000
WS_DP = 0xA0000

def bf16r(v):
    e(f"v_cvt_pk_bf16_f32 v{v}, v{v}, v{v}")
    e(f"v_lshlrev_b32 v{v}, 16, v{v}")

def dpp(op, v, sh):
    nop(1)
    e(f"{op}_dpp v{v}, v{v}, v{v} row_ror:{sh} row_mask:0xf bank_mask:0xf")

def swap_add(v, t, which):
    e(f"v_mov_b32 v{t}, v{v}")
    nop(1)
    e(f"v_permlane{which}_swap_b32 v{v}, v{t}")
    nop(1)
    e(f"v_add_f32 v{v}, v{v}, v{t}")

def allreduce_sum(v, t):
    for sh in (1, 2, 4, 8): dpp("v_add_f32", v, sh)
    swap_add(v, t, 16); swap_add(v, t, 32)

def reduce_list(accs, rors, t):
    for sh in rors:
        nop(1)
        for a in accs:
            e(f"v_add_f32_dpp v{a}, v{a}, v{a} row_ror:{sh} row_mask:0xf bank_mask:0xf")
    for which in (16, 32):
        for a in accs:
            swap_add(a, t, which)

def header(name, n):
    L.append(f".globl {name}")
    L.append(".p2align 8")
    L.append(f".type {name},@function")
    lab(name)
    e(f"s_cmp_ge_u32 s2, {n}")
    e(f"s_cbranch_scc1 {name}_end")

def footer(name):
    lab(f"{name}_end")
    e("s_endpgm")

def unpack(src, lo, hi):
    e(f"v_lshlrev_b32 v{lo}, 16, v{src}")
    e(f"v_and_b32 v{hi}, 0xffff0000, v{src}")

def layernorm_wave(xs, t0, t1, t2):
    e(f"v_add_f32 v{t0}, v{xs[0]}, v{xs[1]}")
    for k in range(2, 8): e(f"v_add_f32 v{t0}, v{t0}, v{xs[k]}")
    allreduce_sum(t0, t1)
    e(f"v_mul_f32 v{t0}, 0x3b000000, v{t0}")
    e(f"v_sub_f32 v{t1}, v{xs[0]}, v{t0}")
    e(f"v_mul_f32 v{t2}, v{t1}, v{t1}")
    for k in range(1, 8):
        e(f"v_sub_f32 v{t1}, v{xs[k]}, v{t0}")
        e(f"v_fmac_f32 v{t2}, v{t1}, v{t1}")
    allreduce_sum(t2, t1)
    e(f"v_mul_f32 v{t2}, 0x3b000000, v{t2}")
    bf16r(t2)
    e(f"v_add_f32 v{t2}, 0x3727c5ac, v{t2}")
    bf16r(t2)
    e(f"v_sqrt_f32 v{t2}, v{t2}")
    nop(0)
    bf16r(t2)
    e(f"v_rcp_f32 v{t2}, v{t2}")
    bf16r(t0)
    for k in range(8):
        e(f"v_sub_f32 v{xs[k]}, v{xs[k]}, v{t0}")
        bf16r(xs[k])
        e(f"v_mul_f32 v{xs[k]}, v{xs[k]}, v{t2}")
        bf16r(xs[k])

def ln_to_lds(xs, vaddr):
    for k in range(8):
        e(f"ds_write_b32 v{vaddr}, v{xs[k]} offset:{k*8}")

def arrive():
    e("s_load_dwordx2 s[22:23], s[0:1], 80")
    e("v_mov_b32 v250, 0")
    e("v_mov_b32 v251, 1")
    e("v_cmp_eq_u32 vcc, 0, v0")
    e("s_and_saveexec_b64 s[24:25], vcc")
    e("s_waitcnt lgkmcnt(0)")
    e("global_atomic_add v250, v251, s[22:23] sc1")
    e("s_mov_b64 exec, s[24:25]")

def poll(name, n):
    e("s_load_dwordx2 s[22:23], s[0:1], 80")
    e("v_mov_b32 v250, 0")
    e("s_waitcnt lgkmcnt(0)")
    lab(name)
    e("global_load_dword v251, v250, s[22:23] sc1")
    e("s_waitcnt vmcnt(0)")
    e("v_readfirstlane_b32 s24, v251")
    e("s_nop 3")
    e(f"s_cmp_ge_u32 s24, {n}")
    e(f"s_cbranch_scc0 {name}")

def k1():
    n = "k1b"
    e("s_cmp_ge_u32 s2, 128")
    e("s_cbranch_scc1 k1b_skip")
    e("s_load_dwordx2 s[4:5], s[0:1], 0")
    e("s_load_dwordx2 s[6:7], s[0:1], 24")
    e("s_load_dwordx2 s[8:9], s[0:1], 88")
    e("v_and_b32 v1, 63, v0")
    e("v_lshrrev_b32 v2, 6, v0")
    e("v_and_b32 v3, 3, v0")
    e("v_lshrrev_b32 v4, 2, v0")
    e("s_lshl_b32 s3, s2, 6")
    e("v_lshlrev_b32 v5, 13, v4")
    e("v_lshl_add_u32 v5, v3, 4, v5")
    e("v_add_u32 v5, s3, v5")
    e("v_and_b32 v6, 1, v2")
    e("v_lshlrev_b32 v7, 10, v6")
    e("v_lshl_add_u32 v7, v1, 4, v7")
    e("s_waitcnt lgkmcnt(0)")
    e("global_load_dwordx4 v[8:11], v7, s[4:5]")
    for i in range(8):
        if i: e(f"v_add_u32 v5, 0x80000, v5")
        e(f"global_load_dwordx4 v[{32+4*i}:{35+4*i}], v5, s[6:7]")
    e("s_waitcnt vmcnt(8)")
    xs = list(range(12, 20))
    for k in range(4): unpack(8+k, 12+2*k, 13+2*k)
    layernorm_wave(xs, 20, 21, 22)
    e("v_lshlrev_b32 v23, 6, v1")
    e("v_lshl_add_u32 v23, v6, 2, v23")
    ln_to_lds(xs, 23)
    e("s_waitcnt lgkmcnt(0)")
    e("s_barrier")
    e("v_lshlrev_b32 v23, 3, v4")
    for i in range(8):
        e(f"ds_read_b64 v[{64+2*i}:{65+2*i}], v23 offset:{512*i}")
    accs = list(range(80, 96))
    for a in accs: e(f"v_mov_b32 v{a}, 0")
    e("s_waitcnt lgkmcnt(0)")
    for i in range(8):
        e(f"s_waitcnt vmcnt({7-i})")
        for k in range(4):
            unpack(32+4*i+k, 24, 25)
            e(f"v_fmac_f32 v{80+2*k}, v{64+2*i}, v24")
            e(f"v_fmac_f32 v{81+2*k}, v{64+2*i}, v25")
            e(f"v_fmac_f32 v{88+2*k}, v{65+2*i}, v24")
            e(f"v_fmac_f32 v{89+2*k}, v{65+2*i}, v25")
    reduce_list(accs, (4, 8), 24)
    e("v_lshlrev_b32 v23, 8, v2")
    e("v_lshl_add_u32 v23, v3, 6, v23")
    e("v_add_u32 v23, 4096, v23")
    e("v_cmp_gt_u32 vcc, 4, v1")
    e("s_and_saveexec_b64 s[10:11], vcc")
    for k in range(4):
        e(f"ds_write_b128 v23, v[{80+4*k}:{83+4*k}] offset:{16*k}")
    e("s_mov_b64 exec, s[10:11]")
    e("s_waitcnt lgkmcnt(0)")
    e("s_barrier")
    e("v_cmp_gt_u32 vcc, 64, v0")
    e("s_and_saveexec_b64 s[10:11], vcc")
    e(f"s_cbranch_execz {n}_end")
    e("v_lshrrev_b32 v24, 5, v0")
    e("v_and_b32 v25, 31, v0")
    e("v_lshrrev_b32 v26, 3, v25")
    e("v_and_b32 v27, 7, v25")
    e("v_lshlrev_b32 v28, 6, v26")
    e("v_lshl_add_u32 v28, v24, 5, v28")
    e("v_lshl_add_u32 v28, v27, 2, v28")
    e("v_add_u32 v28, 4096, v28")
    for w in range(4): e(f"ds_read_b32 v{30+w}, v28 offset:{256*w}")
    e("s_waitcnt lgkmcnt(0)")
    e("v_add_f32 v30, v30, v31")
    e("v_add_f32 v32, v32, v33")
    e("v_add_f32 v30, v30, v32")
    e("v_cvt_pk_bf16_f32 v30, v30, v30")
    e("v_lshlrev_b32 v28, 13, v24")
    e("v_lshl_add_u32 v28, v25, 1, v28")
    e("v_add_u32 v28, s3, v28")
    e(f"global_store_short v28, v30, s[8:9] offset:{WS_Q} sc1")
    lab("k1b_end")
    e("s_mov_b64 exec, -1")
    e("s_waitcnt vmcnt(0)")
    e("s_barrier")
    arrive()
    lab("k1b_skip")

def k2():
    n = "k2_attn_kernel"
    ACC, PB, ML = 0, 32768, 36864
    header(n, 256)
    k1()
    e("s_load_dwordx2 s[4:5], s[0:1], 8")
    e("s_load_dwordx2 s[6:7], s[0:1], 16")
    e("s_load_dwordx2 s[8:9], s[0:1], 88")
    e("s_lshr_b32 s14, s2, 4")
    e("s_and_b32 s15, s2, 15")
    e("s_lshl_b32 s16, s14, 23")
    e("s_lshl_b32 s17, s15, 16")
    e("s_add_u32 s16, s16, s17")
    e(f"s_add_u32 s16, s16, {28672*256}")
    e("v_and_b32 v1, 63, v0")
    e("v_lshrrev_b32 v2, 6, v0")
    e("v_and_b32 v11, 15, v1")
    e("v_lshrrev_b32 v12, 4, v1")
    e("v_lshlrev_b32 v3, 14, v2")
    e("v_lshl_add_u32 v3, v11, 8, v3")
    e("v_lshl_add_u32 v3, v12, 4, v3")
    e("v_add_u32 v4, 4096, v3")
    e("v_add_u32 v5, 8192, v3")
    e("v_add_u32 v6, 12288, v3")
    e("v_lshlrev_b32 v7, 14, v2")
    e("v_lshl_add_u32 v7, v12, 8, v7")
    e("v_lshl_add_u32 v7, v11, 4, v7")
    e("v_add_u32 v8, 4096, v7")
    e("v_add_u32 v9, 8192, v7")
    e("v_add_u32 v10, 12288, v7")
    e("s_waitcnt lgkmcnt(0)")
    poll("k2_poll", 128)
    e("s_add_u32 s10, s4, s16")
    e("s_addc_u32 s11, s5, 0")
    e("s_add_u32 s12, s6, s16")
    e("s_addc_u32 s13, s7, 0")
    for t in range(4):
        for i in range(4):
            r = 16 + (t*4+i)*4
            e(f"global_load_dwordx4 v[{r}:{r+3}], v{3+t}, s[10:11] offset:{64*i}")
    for r in range(144, 160): e(f"v_mov_b32 v{r}, 0")
    e("s_lshl_b32 s18, s14, 10")
    e("v_lshlrev_b32 v13, 8, v11")
    e("v_lshl_add_u32 v13, v12, 4, v13")
    e("v_add_u32 v13, s18, v13")
    e("v_cmp_gt_u32 vcc, 4, v11")
    e("s_and_saveexec_b64 s[20:21], vcc")
    for i in range(4):
        e(f"global_load_dwordx4 v[{144+4*i}:{147+4*i}], v13, s[8:9] offset:{WS_Q+64*i} sc1")
    e("s_mov_b64 exec, s[20:21]")
    for g in range(4):
        for i in range(4):
            r = 80 + (g*4+i)*4
            e(f"global_load_dwordx4 v[{r}:{r+3}], v{7+g}, s[12:13] offset:{1024*i}")
    for r in range(160, 176): e(f"v_mov_b32 v{r}, 0")
    e("s_waitcnt vmcnt(16)")
    nop(1)
    for t in range(4):
        for i in range(4):
            r = 16 + (t*4+i)*4
            e(f"v_mfma_f32_16x16x32_bf16 v[{160+4*t}:{163+4*t}], v[{144+4*i}:{147+4*i}], v[{r}:{r+3}], v[{160+4*t}:{163+4*t}]")
    nop(15)
    for r in range(160, 176):
        bf16r(r)
        e(f"v_mul_f32 v{r}, 0x3db504f3, v{r}")
        bf16r(r)
        e(f"v_mul_f32 v{r}, 0x3fb8aa3b, v{r}")
    for h in range(4):
        e(f"v_max_f32 v{208+h}, v{160+h}, v{164+h}")
        e(f"v_max_f32 v{216}, v{168+h}, v{172+h}")
        e(f"v_max_f32 v{208+h}, v{208+h}, v216")
    for sh in (1, 2, 4, 8):
        nop(1)
        for h in range(4):
            e(f"v_max_f32_dpp v{208+h}, v{208+h}, v{208+h} row_ror:{sh} row_mask:0xf bank_mask:0xf")
    for t in range(4):
        for h in range(4):
            r = 160+4*t+h
            e(f"v_sub_f32 v{r}, v{r}, v{208+h}")
            e(f"v_exp_f32 v{r}, v{r}")
    nop(0)
    for h in range(4):
        e(f"v_add_f32 v{212+h}, v{160+h}, v{164+h}")
        e(f"v_add_f32 v216, v{168+h}, v{172+h}")
        e(f"v_add_f32 v{212+h}, v{212+h}, v216")
    for sh in (1, 2, 4, 8):
        nop(1)
        for h in range(4):
            e(f"v_add_f32_dpp v{212+h}, v{212+h}, v{212+h} row_ror:{sh} row_mask:0xf bank_mask:0xf")
    e("v_lshlrev_b32 v13, 10, v2")
    e("v_lshl_add_u32 v14, v1, 4, v13")
    e(f"v_add_u32 v14, {PB}, v14")
    e("v_cmp_gt_u32 vcc, 16, v1")
    e("s_and_saveexec_b64 s[20:21], vcc")
    for t in range(4):
        e(f"ds_write_b128 v14, v[{160+4*t}:{163+4*t}] offset:{256*t}")
    e("v_cmp_eq_u32 vcc, 0, v1")
    e("s_and_b64 exec, exec, vcc")
    e("v_lshlrev_b32 v15, 5, v2")
    e(f"v_add_u32 v15, {ML}, v15")
    e("ds_write_b128 v15, v[208:211]")
    e("ds_write_b128 v15, v[212:215] offset:16")
    e("s_mov_b64 exec, s[20:21]")
    e("v_lshl_add_u32 v14, v12, 4, v13")
    e(f"v_add_u32 v14, {PB}, v14")
    for i in range(16):
        e(f"ds_read_b128 v[{16+4*i}:{19+4*i}], v14 offset:{64*i}")
    for r in range(176, 208): e(f"v_mov_b32 v{r}, 0")
    e("s_waitcnt lgkmcnt(0)")
    for i in range(16):
        e(f"s_waitcnt vmcnt({15-i})")
        for k in range(4):
            unpack(80+4*i+k, 216+2*k, 217+2*k)
        for h in range(4):
            for j in range(8):
                e(f"v_fmac_f32 v{176+8*h+j}, v{16+4*i+h}, v{216+j}")
    e("v_lshlrev_b32 v14, 2, v2")
    e("v_add_u32 v14, v14, v12")
    e("v_lshlrev_b32 v14, 11, v14")
    e("v_lshl_add_u32 v14, v11, 5, v14")
    for h in range(4):
        e(f"ds_write_b128 v14, v[{176+8*h}:{179+8*h}] offset:{512*h}")
        e(f"ds_write_b128 v14, v[{180+8*h}:{183+8*h}] offset:{512*h+16}")
    e("s_waitcnt lgkmcnt(0)")
    e("s_barrier")
    e("v_lshlrev_b32 v14, 9, v2")
    e("v_lshl_add_u32 v14, v1, 3, v14")
    for p in range(16):
        e(f"ds_read_b64 v[{16+2*p}:{17+2*p}], v14 offset:{2048*p}")
    e("v_lshlrev_b32 v15, 2, v2")
    for w in range(4):
        e(f"ds_read_b32 v{48+w}, v15 offset:{ML+32*w}")
        e(f"ds_read_b32 v{52+w}, v15 offset:{ML+32*w+16}")
    e("s_waitcnt lgkmcnt(0)")
    e("v_max_f32 v56, v48, v49")
    e("v_max_f32 v57, v50, v51")
    e("v_max_f32 v56, v56, v57")
    for w in range(4):
        e(f"v_sub_f32 v{48+w}, v{48+w}, v56")
        e(f"v_exp_f32 v{48+w}, v{48+w}")
    nop(0)
    e("v_mul_f32 v57, v48, v52")
    for w in range(1, 4): e(f"v_fmac_f32 v57, v{48+w}, v{52+w}")
    e("v_mov_b32 v58, 0")
    e("v_mov_b32 v59, 0")
    for w in range(4):
        for rg in range(4):
            p = w*4+rg
            e(f"v_fmac_f32 v58, v{48+w}, v{16+2*p}")
            e(f"v_fmac_f32 v59, v{48+w}, v{17+2*p}")
    e("s_lshl_b32 s18, s14, 6")
    e("s_add_u32 s18, s18, s15")
    e("v_lshlrev_b32 v14, 4, v2")
    e("v_add_u32 v14, s18, v14")
    e("v_lshlrev_b32 v15, 9, v14")
    e("v_lshl_add_u32 v15, v1, 3, v15")
    e(f"v_add_u32 v15, {WS_OP}, v15")
    e("global_store_dwordx2 v15, v[58:59], s[8:9]")
    e("v_lshlrev_b32 v15, 3, v14")
    e(f"v_add_u32 v15, {WS_ML}, v15")
    e("v_cmp_eq_u32 vcc, 0, v1")
    e("s_and_saveexec_b64 s[20:21], vcc")
    e(f"global_store_dwordx2 v15, v[56:57], s[8:9] offset:0")
    footer(n)

def k3():
    n = "k3_oproj_kernel"
    header(n, 256)
    e("s_load_dwordx2 s[6:7], s[0:1], 32")
    e("s_load_dwordx2 s[8:9], s[0:1], 88")
    e("s_lshr_b32 s14, s2, 4")
    e("s_and_b32 s15, s2, 15")
    e("v_and_b32 v1, 63, v0")
    e("v_lshrrev_b32 v2, 6, v0")
    e("v_and_b32 v3, 3, v0")
    e("v_lshrrev_b32 v4, 2, v0")
    e("s_lshl_b32 s16, s14, 18")
    e("s_lshl_b32 s17, s15, 6")
    e("s_add_u32 s16, s16, s17")
    e("v_lshlrev_b32 v5, 10, v4")
    e("v_lshl_add_u32 v5, v3, 4, v5")
    e("v_add_u32 v5, s16, v5")
    e("s_waitcnt lgkmcnt(0)")
    for i in range(4):
        if i: e("v_add_u32 v5, 0x10000, v5")
        e(f"global_load_dwordx4 v[{16+4*i}:{19+4*i}], v5, s[6:7]")
    e("v_lshrrev_b32 v6, 7, v0")
    e("s_lshl_b32 s18, s14, 1")
    e("v_add_u32 v6, s18, v6")
    e("v_and_b32 v7, 127, v0")
    for b in range(2):
        e(f"v_lshlrev_b32 v8, 7, v6")
        e(f"v_add_u32 v8, {WS_ML + b*4096}, v8")
        for k in range(8):
            e(f"global_load_dwordx4 v[{32+4*k}:{35+4*k}], v8, s[8:9] offset:{16*k}")
        e(f"v_lshlrev_b32 v9, 13, v6")
        e(f"v_lshl_add_u32 v9, v7, 2, v9")
        e(f"v_add_u32 v9, {WS_OP + b*32*8192}, v9")
        e(f"v_add_u32 v10, 4096, v9")
        for c in range(16):
            e(f"global_load_dword v{64+c}, v{9 if c < 8 else 10}, s[8:9] offset:{512*(c%8)}")
        e("s_waitcnt vmcnt(16)")
        e("v_max_f32 v80, v32, v34")
        for c in range(2, 16): e(f"v_max_f32 v80, v80, v{32+2*c}")
        for c in range(16):
            e(f"v_sub_f32 v{32+2*c}, v{32+2*c}, v80")
            e(f"v_exp_f32 v{32+2*c}, v{32+2*c}")
        nop(0)
        e("v_mul_f32 v81, v32, v33")
        for c in range(1, 16): e(f"v_fmac_f32 v81, v{32+2*c}, v{33+2*c}")
        e("v_rcp_f32 v81, v81")
        e("s_waitcnt vmcnt(0)")
        e("v_mul_f32 v82, v32, v64")
        for c in range(1, 16): e(f"v_fmac_f32 v82, v{32+2*c}, v{64+c}")
        e("v_mul_f32 v82, v82, v81")
        bf16r(82)
        e("v_lshlrev_b32 v11, 3, v0")
        e(f"ds_write_b32 v11, v82 offset:{4*b}")
    e("s_waitcnt lgkmcnt(0)")
    e("s_barrier")
    e("v_lshlrev_b32 v11, 3, v4")
    for i in range(4):
        e(f"ds_read_b64 v[{64+2*i}:{65+2*i}], v11 offset:{512*i}")
    accs = list(range(80, 96))
    for a in accs: e(f"v_mov_b32 v{a}, 0")
    e("s_waitcnt lgkmcnt(0)")
    for i in range(4):
        for k in range(4):
            unpack(16+4*i+k, 24+8, 25+8)
            e(f"v_fmac_f32 v{80+2*k}, v{64+2*i}, v32")
            e(f"v_fmac_f32 v{81+2*k}, v{64+2*i}, v33")
            e(f"v_fmac_f32 v{88+2*k}, v{65+2*i}, v32")
            e(f"v_fmac_f32 v{89+2*k}, v{65+2*i}, v33")
    reduce_list(accs, (4, 8), 34)
    e("v_lshlrev_b32 v23, 8, v2")
    e("v_lshl_add_u32 v23, v3, 6, v23")
    e("v_add_u32 v23, 4096, v23")
    e("v_cmp_gt_u32 vcc, 4, v1")
    e("s_and_saveexec_b64 s[10:11], vcc")
    for k in range(4):
        e(f"ds_write_b128 v23, v[{80+4*k}:{83+4*k}] offset:{16*k}")
    e("s_mov_b64 exec, s[10:11]")
    e("s_waitcnt lgkmcnt(0)")
    e("s_barrier")
    e("v_cmp_gt_u32 vcc, 64, v0")
    e("s_and_saveexec_b64 s[10:11], vcc")
    e(f"s_cbranch_execz {n}_end")
    e("v_lshrrev_b32 v24, 5, v0")
    e("v_and_b32 v25, 31, v0")
    e("v_lshrrev_b32 v26, 3, v25")
    e("v_and_b32 v27, 7, v25")
    e("v_lshlrev_b32 v28, 6, v26")
    e("v_lshl_add_u32 v28, v24, 5, v28")
    e("v_lshl_add_u32 v28, v27, 2, v28")
    e("v_add_u32 v28, 4096, v28")
    for w in range(4): e(f"ds_read_b32 v{30+w}, v28 offset:{256*w}")
    e("s_waitcnt lgkmcnt(0)")
    e("v_add_f32 v30, v30, v31")
    e("v_add_f32 v32, v32, v33")
    e("v_add_f32 v30, v30, v32")
    e("s_lshl_b32 s16, s14, 12")
    e("s_lshl_b32 s17, s15, 7")
    e("s_add_u32 s16, s16, s17")
    e(f"s_add_u32 s16, s16, {WS_AO}")
    e("v_lshlrev_b32 v28, 11, v24")
    e("v_lshl_add_u32 v28, v25, 2, v28")
    e("v_add_u32 v28, s16, v28")
    e("global_store_dword v28, v30, s[8:9]")
    footer(n)

def k4():
    n = "k4_mlp_kernel"
    header(n, 112)
    e("s_load_dwordx2 s[4:5], s[0:1], 0")
    e("s_load_dwordx2 s[6:7], s[0:1], 48")
    e("s_load_dwordx2 s[10:11], s[0:1], 56")
    e("s_load_dwordx2 s[12:13], s[0:1], 64")
    e("s_load_dwordx2 s[8:9], s[0:1], 88")
    e("v_and_b32 v1, 63, v0")
    e("v_lshrrev_b32 v2, 6, v0")
    e("v_and_b32 v3, 1, v0")
    e("v_lshrrev_b32 v4, 1, v0")
    e("s_mov_b32 s3, 3584")
    e("v_mul_lo_u32 v5, v4, s3")
    e("v_lshl_add_u32 v5, v3, 4, v5")
    e("s_lshl_b32 s16, s2, 5")
    e("v_add_u32 v5, s16, v5")
    e("v_and_b32 v6, 1, v2")
    e("s_waitcnt lgkmcnt(0)")
    for i in range(4):
        if i: e(f"v_add_u32 v5, {128*3584}, v5")
        e(f"global_load_dwordx4 v[{96+4*i}:{99+4*i}], v5, s[6:7]")
        e(f"global_load_dwordx4 v[{112+4*i}:{115+4*i}], v5, s[10:11]")
    e("s_lshl_b32 s17, s2, 14")
    e("v_lshlrev_b32 v7, 2, v0")
    e("v_add_u32 v7, s17, v7")
    e("v_add_u32 v8, 4096, v7")
    e("v_add_u32 v9, 8192, v7")
    e("v_add_u32 v10, 12288, v7")
    for i in range(16):
        e(f"global_load_dword v{128+i}, v{7+i//4}, s[12:13] offset:{1024*(i%4)}")
    e("v_lshlrev_b32 v11, 10, v6")
    e("v_lshl_add_u32 v11, v1, 4, v11")
    e("global_load_dwordx4 v[12:15], v11, s[4:5]")
    e("v_lshlrev_b32 v11, 11, v6")
    e("v_lshl_add_u32 v11, v1, 5, v11")
    e(f"v_add_u32 v11, {WS_AO}, v11")
    for s in range(16):
        if s: e("v_add_u32 v11, 4096, v11")
        e(f"global_load_dwordx4 v[{32+8*(s%4)}:{35+8*(s%4)}], v11, s[8:9]")
        e(f"global_load_dwordx4 v[{36+8*(s%4)}:{39+8*(s%4)}], v11, s[8:9] offset:16")
        if s % 4 == 3:
            e("s_waitcnt vmcnt(0)")
            for k in range(8):
                if s == 3:
                    e(f"v_add_f32 v{24+k}, v{32+k}, v{40+k}")
                else:
                    e(f"v_add_f32 v{24+k}, v{24+k}, v{32+k}")
                    e(f"v_add_f32 v{24+k}, v{24+k}, v{40+k}")
                e(f"v_add_f32 v{48+k}, v{48+k}, v{56+k}")
                e(f"v_add_f32 v{24+k}, v{24+k}, v{48+k}")
    for k in range(4): unpack(12+k, 16+2*k, 17+2*k)
    xs = list(range(16, 24))
    for k in range(8):
        bf16r(24+k)
        e(f"v_add_f32 v{16+k}, v{16+k}, v{24+k}")
        bf16r(16+k)
    layernorm_wave(xs, 24, 25, 26)
    e("v_lshlrev_b32 v27, 6, v1")
    e("v_lshl_add_u32 v27, v6, 2, v27")
    ln_to_lds(xs, 27)
    e("s_waitcnt lgkmcnt(0)")
    e("s_barrier")
    e("v_lshlrev_b32 v27, 3, v4")
    for i in range(4):
        e(f"ds_read_b64 v[{64+2*i}:{65+2*i}], v27 offset:{1024*i}")
    accs = list(range(144, 176))
    for a in accs: e(f"v_mov_b32 v{a}, 0")
    e("s_waitcnt lgkmcnt(0)")
    for i in range(4):
        for m in range(2):
            for k in range(4):
                unpack(96+16*m+4*i+k, 28, 29)
                e(f"v_fmac_f32 v{144+16*m+2*k}, v{64+2*i}, v28")
                e(f"v_fmac_f32 v{145+16*m+2*k}, v{64+2*i}, v29")
                e(f"v_fmac_f32 v{152+16*m+2*k}, v{65+2*i}, v28")
                e(f"v_fmac_f32 v{153+16*m+2*k}, v{65+2*i}, v29")
    reduce_list(accs, (2, 4, 8), 28)
    e("v_lshlrev_b32 v27, 8, v2")
    e("v_lshl_add_u32 v27, v3, 7, v27")
    e("v_add_u32 v27, 4096, v27")
    e("v_cmp_gt_u32 vcc, 2, v1")
    e("s_and_saveexec_b64 s[14:15], vcc")
    for k in range(8):
        e(f"ds_write_b128 v27, v[{144+4*k}:{147+4*k}] offset:{16*k}")
    e("s_mov_b64 exec, s[14:15]")
    e("s_waitcnt lgkmcnt(0)")
    e("s_barrier")
    e("v_cmp_gt_u32 vcc, 32, v0")
    e("s_and_saveexec_b64 s[14:15], vcc")
    e("v_lshrrev_b32 v24, 4, v0")
    e("v_and_b32 v25, 15, v0")
    e("v_lshrrev_b32 v26, 3, v25")
    e("v_and_b32 v27, 7, v25")
    e("v_lshlrev_b32 v28, 7, v26")
    e("v_lshl_add_u32 v28, v24, 5, v28")
    e("v_lshl_add_u32 v28, v27, 2, v28")
    e("v_add_u32 v28, 4096, v28")
    for w in range(4):
        e(f"ds_read_b32 v{30+w}, v28 offset:{256*w}")
        e(f"ds_read_b32 v{34+w}, v28 offset:{256*w+64}")
    e("s_waitcnt lgkmcnt(0)")
    e("v_add_f32 v30, v30, v31")
    e("v_add_f32 v32, v32, v33")
    e("v_add_f32 v30, v30, v32")
    e("v_add_f32 v34, v34, v35")
    e("v_add_f32 v36, v36, v37")
    e("v_add_f32 v34, v34, v36")
    bf16r(30); bf16r(34)
    e("v_mul_f32 v30, 0xbfb8aa3b, v30")
    e("v_exp_f32 v30, v30")
    nop(0)
    e("v_add_f32 v30, 1.0, v30")
    e("v_rcp_f32 v30, v30")
    nop(0)
    bf16r(30)
    e("v_mul_f32 v30, v30, v34")
    bf16r(30)
    e("v_lshlrev_b32 v28, 3, v25")
    e("v_lshl_add_u32 v28, v24, 2, v28")
    e("ds_write_b32 v28, v30 offset:5120")
    e("s_mov_b64 exec, s[14:15]")
    e("s_waitcnt lgkmcnt(0)")
    e("s_barrier")
    e("v_mov_b32 v27, 0")
    for i in range(16):
        e(f"ds_read_b64 v[{32+2*i}:{33+2*i}], v27 offset:{5120+8*i}")
    for a in range(24, 28): e(f"v_mov_b32 v{a}, 0")
    e("s_waitcnt lgkmcnt(0)")
    for i in range(16):
        unpack(128+i, 28, 29)
        e(f"v_fmac_f32 v24, v{32+2*i}, v28")
        e(f"v_fmac_f32 v25, v{32+2*i}, v29")
        e(f"v_fmac_f32 v26, v{33+2*i}, v28")
        e(f"v_fmac_f32 v27, v{33+2*i}, v29")
    e("s_lshl_b32 s16, s2, 12")
    e(f"s_add_u32 s16, s16, {WS_DP}")
    e("v_lshlrev_b32 v28, 3, v0")
    e("v_add_u32 v28, s16, v28")
    e("global_store_dwordx2 v28, v[24:25], s[8:9] sc1")
    e("global_store_dwordx2 v28, v[26:27], s[8:9] offset:2048 sc1")
    e("s_waitcnt vmcnt(0)")
    e("s_barrier")
    arrive()
    e("s_cmp_ge_u32 s2, 16")
    e(f"s_cbranch_scc1 {n}_end")
    poll("k4_poll", 112)
    k5()
    footer(n)

def k5():
    n = "k4_mlp_kernel"
    e("s_load_dwordx2 s[4:5], s[0:1], 0")
    e("s_load_dwordx2 s[6:7], s[0:1], 72")
    e("s_load_dwordx2 s[8:9], s[0:1], 88")
    e("v_and_b32 v1, 63, v0")
    e("v_lshrrev_b32 v2, 6, v0")
    e("s_lshl_b32 s3, s2, 6")
    e("v_add_u32 v3, s3, v1")
    e("s_mov_b32 s10, 114688")
    e("v_mul_lo_u32 v4, v2, s10")
    e("v_lshl_add_u32 v4, v3, 2, v4")
    e(f"v_add_u32 v4, {WS_DP}, v4")
    e("v_lshlrev_b32 v5, 14, v2")
    e("v_lshl_add_u32 v5, v3, 2, v5")
    e(f"v_add_u32 v5, {WS_AO}, v5")
    e("s_waitcnt lgkmcnt(0)")
    for i in range(28):
        if i and i % 1 == 0: pass
        e(f"global_load_dword v{16+i}, v4, s[8:9] sc1")
        e("v_add_u32 v4, 4096, v4")
    for i in range(4):
        e(f"global_load_dword v{44+i}, v5, s[8:9]")
        e("v_add_u32 v5, 4096, v5")
    e("v_lshlrev_b32 v6, 1, v3")
    e("global_load_ushort v48, v6, s[4:5]")
    e("s_waitcnt vmcnt(0)")
    for i in range(1, 28): e(f"v_add_f32 v16, v16, v{16+i}")
    for i in range(1, 4): e(f"v_add_f32 v44, v44, v{44+i}")
    e("v_lshlrev_b32 v7, 3, v0")
    e("ds_write_b64 v7, v[16:17]")
    L.pop()
    e("v_mov_b32 v17, v44")
    e("ds_write_b64 v7, v[16:17]")
    e("s_waitcnt lgkmcnt(0)")
    e("s_barrier")
    e("v_cmp_gt_u32 vcc, 64, v0")
    e("s_and_saveexec_b64 s[10:11], vcc")
    e(f"s_cbranch_execz {n}_end")
    for w in range(4): e(f"ds_read_b64 v[{20+2*w}:{21+2*w}], v7 offset:{512*w}")
    e("s_waitcnt lgkmcnt(0)")
    e("v_add_f32 v20, v20, v22")
    e("v_add_f32 v24, v24, v26")
    e("v_add_f32 v20, v20, v24")
    e("v_add_f32 v21, v21, v23")
    e("v_add_f32 v25, v25, v27")
    e("v_add_f32 v21, v21, v25")
    bf16r(21)
    e("v_lshlrev_b32 v48, 16, v48")
    e("v_add_f32 v21, v21, v48")
    bf16r(21)
    bf16r(20)
    e("v_add_f32 v20, v20, v21")
    e("v_cvt_pk_bf16_f32 v20, v20, v20")
    e("global_store_short v6, v20, s[6:7]")

hdr = open('sequential_preLN__sliding_block_cached__glu_gated_glu__decode.s.ref').read().split('\n')
top = [l for l in hdr if l.startswith(';') and '@launch' not in l]
out = top[:]
out.append("; @launch kernel=k2_attn_kernel grid=(256,1,1) block=(256,1,1) lds=37120")
out.append("; @launch kernel=k3_oproj_kernel grid=(256,1,1) block=(256,1,1) lds=8192")
out.append("; @launch kernel=k4_mlp_kernel grid=(112,1,1) block=(256,1,1) lds=8192")
out.append('.amdgcn_target "amdgcn-amd-amdhsa--gfx950"')
out.append(".text")
for f in (k2, k3, k4): f()
out += L
out.append('.section .rodata,"a"')
for name in ("k2_attn_kernel","k3_oproj_kernel","k4_mlp_kernel"):
    out += [".p2align 6", f".amdhsa_kernel {name}", "  .amdhsa_next_free_vgpr 256", "  .amdhsa_next_free_sgpr 102",
            "  .amdhsa_accum_offset 256", "  .amdhsa_group_segment_fixed_size 0", "  .amdhsa_kernarg_size 96",
            "  .amdhsa_user_sgpr_count 2", "  .amdhsa_user_sgpr_kernarg_segment_ptr 1",
            "  .amdhsa_system_sgpr_workgroup_id_x 1", ".end_amdhsa_kernel"]
open('sequential_preLN__sliding_block_cached__glu_gated_glu__decode.s','w').write('\n'.join(out)+'\n')
```

```python
import sys
L = []
def e(s): L.append("    " + s)
def lab(s): L.append(s + ":")
def nop(n=1): e(f"s_nop {n}")

WS_Q  = 0x0
WS_ML = 0x8000
WS_OP = 0x10000
WS_AO = 0x90000
WS_DP = 0xA0000

def bf16r(v):
    e(f"v_cvt_pk_bf16_f32 v{v}, v{v}, v{v}")
    e(f"v_lshlrev_b32 v{v}, 16, v{v}")

def dpp(op, v, sh):
    nop(1)
    e(f"{op}_dpp v{v}, v{v}, v{v} row_ror:{sh} row_mask:0xf bank_mask:0xf")

def swap_add(v, t, which):
    e(f"v_mov_b32 v{t}, v{v}")
    nop(1)
    e(f"v_permlane{which}_swap_b32 v{v}, v{t}")
    nop(1)
    e(f"v_add_f32 v{v}, v{v}, v{t}")

def allreduce_sum(v, t):
    for sh in (1, 2, 4, 8): dpp("v_add_f32", v, sh)
    swap_add(v, t, 16); swap_add(v, t, 32)

def reduce_list(accs, rors, t):
    for sh in rors:
        nop(1)
        for a in accs:
            e(f"v_add_f32_dpp v{a}, v{a}, v{a} row_ror:{sh} row_mask:0xf bank_mask:0xf")
    for which in (16, 32):
        for a in accs:
            swap_add(a, t, which)

def header(name, n):
    L.append(f".globl {name}")
    L.append(".p2align 8")
    L.append(f".type {name},@function")
    lab(name)
    e(f"s_cmp_ge_u32 s2, {n}")
    e(f"s_cbranch_scc1 {name}_end")

def footer(name):
    lab(f"{name}_end")
    e("s_endpgm")

def unpack(src, lo, hi):
    e(f"v_lshlrev_b32 v{lo}, 16, v{src}")
    e(f"v_and_b32 v{hi}, 0xffff0000, v{src}")

def layernorm_wave(xs, t0, t1, t2):
    e(f"v_add_f32 v{t0}, v{xs[0]}, v{xs[1]}")
    for k in range(2, 8): e(f"v_add_f32 v{t0}, v{t0}, v{xs[k]}")
    allreduce_sum(t0, t1)
    e(f"v_mul_f32 v{t0}, 0x3b000000, v{t0}")
    e(f"v_sub_f32 v{t1}, v{xs[0]}, v{t0}")
    e(f"v_mul_f32 v{t2}, v{t1}, v{t1}")
    for k in range(1, 8):
        e(f"v_sub_f32 v{t1}, v{xs[k]}, v{t0}")
        e(f"v_fmac_f32 v{t2}, v{t1}, v{t1}")
    allreduce_sum(t2, t1)
    e(f"v_mul_f32 v{t2}, 0x3b000000, v{t2}")
    bf16r(t2)
    e(f"v_add_f32 v{t2}, 0x3727c5ac, v{t2}")
    bf16r(t2)
    e(f"v_sqrt_f32 v{t2}, v{t2}")
    nop(0)
    bf16r(t2)
    e(f"v_rcp_f32 v{t2}, v{t2}")
    bf16r(t0)
    for k in range(8):
        e(f"v_sub_f32 v{xs[k]}, v{xs[k]}, v{t0}")
        bf16r(xs[k])
        e(f"v_mul_f32 v{xs[k]}, v{xs[k]}, v{t2}")
        bf16r(xs[k])

def ln_to_lds(xs, vaddr):
    for k in range(8):
        e(f"ds_write_b32 v{vaddr}, v{xs[k]} offset:{k*8}")

def arrive():
    e("s_load_dwordx2 s[22:23], s[0:1], 80")
    e("v_mov_b32 v250, 0")
    e("v_mov_b32 v251, 1")
    e("v_cmp_eq_u32 vcc, 0, v0")
    e("s_and_saveexec_b64 s[24:25], vcc")
    e("s_waitcnt lgkmcnt(0)")
    e("global_atomic_add v250, v251, s[22:23] sc1")
    e("s_mov_b64 exec, s[24:25]")

def poll(name, n):
    e("s_load_dwordx2 s[22:23], s[0:1], 80")
    e("v_mov_b32 v250, 0")
    e("s_waitcnt lgkmcnt(0)")
    lab(name)
    e("global_load_dword v251, v250, s[22:23] sc1")
    e("s_waitcnt vmcnt(0)")
    e("v_readfirstlane_b32 s24, v251")
    e("s_nop 3")
    e(f"s_cmp_ge_u32 s24, {n}")
    e(f"s_cbranch_scc0 {name}")

def k1():
    n = "k1_qproj_kernel"
    header(n, 128)
    e("s_load_dwordx2 s[4:5], s[0:1], 0")
    e("s_load_dwordx2 s[6:7], s[0:1], 24")
    e("s_load_dwordx2 s[8:9], s[0:1], 88")
    e("v_and_b32 v1, 63, v0")
    e("v_lshrrev_b32 v2, 6, v0")
    e("v_and_b32 v3, 3, v0")
    e("v_lshrrev_b32 v4, 2, v0")
    e("s_lshl_b32 s3, s2, 6")
    e("v_lshlrev_b32 v5, 13, v4")
    e("v_lshl_add_u32 v5, v3, 4, v5")
    e("v_add_u32 v5, s3, v5")
    e("v_and_b32 v6, 1, v2")
    e("v_lshlrev_b32 v7, 10, v6")
    e("v_lshl_add_u32 v7, v1, 4, v7")
    e("s_waitcnt lgkmcnt(0)")
    e("global_load_dwordx4 v[8:11], v7, s[4:5]")
    for i in range(8):
        if i: e(f"v_add_u32 v5, 0x80000, v5")
        e(f"global_load_dwordx4 v[{32+4*i}:{35+4*i}], v5, s[6:7] nt")
    e("s_waitcnt vmcnt(8)")
    xs = list(range(12, 20))
    for k in range(4): unpack(8+k, 12+2*k, 13+2*k)
    layernorm_wave(xs, 20, 21, 22)
    e("v_lshlrev_b32 v23, 6, v1")
    e("v_lshl_add_u32 v23, v6, 2, v23")
    ln_to_lds(xs, 23)
    e("s_waitcnt lgkmcnt(0)")
    e("s_barrier")
    e("v_lshlrev_b32 v23, 3, v4")
    for i in range(8):
        e(f"ds_read_b64 v[{64+2*i}:{65+2*i}], v23 offset:{512*i}")
    accs = list(range(80, 96))
    for a in accs: e(f"v_mov_b32 v{a}, 0")
    e("s_waitcnt lgkmcnt(0)")
    for i in range(8):
        e(f"s_waitcnt vmcnt({7-i})")
        for k in range(4):
            unpack(32+4*i+k, 24, 25)
            e(f"v_fmac_f32 v{80+2*k}, v{64+2*i}, v24")
            e(f"v_fmac_f32 v{81+2*k}, v{64+2*i}, v25")
            e(f"v_fmac_f32 v{88+2*k}, v{65+2*i}, v24")
            e(f"v_fmac_f32 v{89+2*k}, v{65+2*i}, v25")
    reduce_list(accs, (4, 8), 24)
    e("v_lshlrev_b32 v23, 8, v2")
    e("v_lshl_add_u32 v23, v3, 6, v23")
    e("v_add_u32 v23, 4096, v23")
    e("v_cmp_gt_u32 vcc, 4, v1")
    e("s_and_saveexec_b64 s[10:11], vcc")
    for k in range(4):
        e(f"ds_write_b128 v23, v[{80+4*k}:{83+4*k}] offset:{16*k}")
    e("s_mov_b64 exec, s[10:11]")
    e("s_waitcnt lgkmcnt(0)")
    e("s_barrier")
    e("v_cmp_gt_u32 vcc, 64, v0")
    e("s_and_saveexec_b64 s[10:11], vcc")
    e(f"s_cbranch_execz {n}_end")
    e("v_lshrrev_b32 v24, 5, v0")
    e("v_and_b32 v25, 31, v0")
    e("v_lshrrev_b32 v26, 3, v25")
    e("v_and_b32 v27, 7, v25")
    e("v_lshlrev_b32 v28, 6, v26")
    e("v_lshl_add_u32 v28, v24, 5, v28")
    e("v_lshl_add_u32 v28, v27, 2, v28")
    e("v_add_u32 v28, 4096, v28")
    for w in range(4): e(f"ds_read_b32 v{30+w}, v28 offset:{256*w}")
    e("s_waitcnt lgkmcnt(0)")
    e("v_add_f32 v30, v30, v31")
    e("v_add_f32 v32, v32, v33")
    e("v_add_f32 v30, v30, v32")
    e("v_cvt_pk_bf16_f32 v30, v30, v30")
    e("v_lshlrev_b32 v28, 13, v24")
    e("v_lshl_add_u32 v28, v25, 1, v28")
    e("v_add_u32 v28, s3, v28")
    e(f"global_store_short v28, v30, s[8:9] offset:{WS_Q}")
    footer(n)

def k2():
    n = "k2_attn_kernel"
    ACC, PB, ML = 0, 32768, 36864
    header(n, 256)
    e("s_load_dwordx2 s[4:5], s[0:1], 8")
    e("s_load_dwordx2 s[6:7], s[0:1], 16")
    e("s_load_dwordx2 s[8:9], s[0:1], 88")
    e("s_lshr_b32 s14, s2, 4")
    e("s_and_b32 s15, s2, 15")
    e("s_lshl_b32 s16, s14, 23")
    e("s_lshl_b32 s17, s15, 16")
    e("s_add_u32 s16, s16, s17")
    e(f"s_add_u32 s16, s16, {28672*256}")
    e("v_and_b32 v1, 63, v0")
    e("v_lshrrev_b32 v2, 6, v0")
    e("v_and_b32 v11, 15, v1")
    e("v_lshrrev_b32 v12, 4, v1")
    e("v_lshlrev_b32 v3, 14, v2")
    e("v_lshl_add_u32 v3, v11, 8, v3")
    e("v_lshl_add_u32 v3, v12, 4, v3")
    e("v_add_u32 v4, 4096, v3")
    e("v_add_u32 v5, 8192, v3")
    e("v_add_u32 v6, 12288, v3")
    e("v_lshlrev_b32 v7, 14, v2")
    e("v_lshl_add_u32 v7, v12, 8, v7")
    e("v_lshl_add_u32 v7, v11, 4, v7")
    e("v_add_u32 v8, 4096, v7")
    e("v_add_u32 v9, 8192, v7")
    e("v_add_u32 v10, 12288, v7")
    e("s_waitcnt lgkmcnt(0)")
    e("s_add_u32 s10, s4, s16")
    e("s_addc_u32 s11, s5, 0")
    e("s_add_u32 s12, s6, s16")
    e("s_addc_u32 s13, s7, 0")
    for t in range(4):
        for i in range(4):
            r = 16 + (t*4+i)*4
            e(f"global_load_dwordx4 v[{r}:{r+3}], v{3+t}, s[10:11] offset:{64*i} nt")
    for r in range(144, 160): e(f"v_mov_b32 v{r}, 0")
    e("s_lshl_b32 s18, s14, 10")
    e("v_lshlrev_b32 v13, 8, v11")
    e("v_lshl_add_u32 v13, v12, 4, v13")
    e("v_add_u32 v13, s18, v13")
    e("v_cmp_gt_u32 vcc, 4, v11")
    e("s_and_saveexec_b64 s[20:21], vcc")
    for i in range(4):
        e(f"global_load_dwordx4 v[{144+4*i}:{147+4*i}], v13, s[8:9] offset:{WS_Q+64*i}")
    e("s_mov_b64 exec, s[20:21]")
    for g in range(4):
        for i in range(4):
            r = 80 + (g*4+i)*4
            e(f"global_load_dwordx4 v[{r}:{r+3}], v{7+g}, s[12:13] offset:{1024*i} nt")
    for r in range(160, 176): e(f"v_mov_b32 v{r}, 0")
    e("s_waitcnt vmcnt(16)")
    nop(1)
    for t in range(4):
        for i in range(4):
            r = 16 + (t*4+i)*4
            e(f"v_mfma_f32_16x16x32_bf16 v[{160+4*t}:{163+4*t}], v[{144+4*i}:{147+4*i}], v[{r}:{r+3}], v[{160+4*t}:{163+4*t}]")
    nop(15)
    for r in range(160, 176):
        bf16r(r)
        e(f"v_mul_f32 v{r}, 0x3db504f3, v{r}")
        bf16r(r)
        e(f"v_mul_f32 v{r}, 0x3fb8aa3b, v{r}")
    for h in range(4):
        e(f"v_max_f32 v{208+h}, v{160+h}, v{164+h}")
        e(f"v_max_f32 v{216}, v{168+h}, v{172+h}")
        e(f"v_max_f32 v{208+h}, v{208+h}, v216")
    for sh in (1, 2, 4, 8):
        nop(1)
        for h in range(4):
            e(f"v_max_f32_dpp v{208+h}, v{208+h}, v{208+h} row_ror:{sh} row_mask:0xf bank_mask:0xf")
    for t in range(4):
        for h in range(4):
            r = 160+4*t+h
            e(f"v_sub_f32 v{r}, v{r}, v{208+h}")
            e(f"v_exp_f32 v{r}, v{r}")
    nop(0)
    for h in range(4):
        e(f"v_add_f32 v{212+h}, v{160+h}, v{164+h}")
        e(f"v_add_f32 v216, v{168+h}, v{172+h}")
        e(f"v_add_f32 v{212+h}, v{212+h}, v216")
    for sh in (1, 2, 4, 8):
        nop(1)
        for h in range(4):
            e(f"v_add_f32_dpp v{212+h}, v{212+h}, v{212+h} row_ror:{sh} row_mask:0xf bank_mask:0xf")
    e("v_lshlrev_b32 v13, 10, v2")
    e("v_lshl_add_u32 v14, v1, 4, v13")
    e(f"v_add_u32 v14, {PB}, v14")
    e("v_cmp_gt_u32 vcc, 16, v1")
    e("s_and_saveexec_b64 s[20:21], vcc")
    for t in range(4):
        e(f"ds_write_b128 v14, v[{160+4*t}:{163+4*t}] offset:{256*t}")
    e("v_cmp_eq_u32 vcc, 0, v1")
    e("s_and_b64 exec, exec, vcc")
    e("v_lshlrev_b32 v15, 5, v2")
    e(f"v_add_u32 v15, {ML}, v15")
    e("ds_write_b128 v15, v[208:211]")
    e("ds_write_b128 v15, v[212:215] offset:16")
    e("s_mov_b64 exec, s[20:21]")
    e("v_lshl_add_u32 v14, v12, 4, v13")
    e(f"v_add_u32 v14, {PB}, v14")
    for i in range(16):
        e(f"ds_read_b128 v[{16+4*i}:{19+4*i}], v14 offset:{64*i}")
    for r in range(176, 208): e(f"v_mov_b32 v{r}, 0")
    e("s_waitcnt lgkmcnt(0)")
    for i in range(16):
        e(f"s_waitcnt vmcnt({15-i})")
        for k in range(4):
            unpack(80+4*i+k, 216+2*k, 217+2*k)
        for h in range(4):
            for j in range(8):
                e(f"v_fmac_f32 v{176+8*h+j}, v{16+4*i+h}, v{216+j}")
    e("v_lshlrev_b32 v14, 2, v2")
    e("v_add_u32 v14, v14, v12")
    e("v_lshlrev_b32 v14, 11, v14")
    e("v_lshl_add_u32 v14, v11, 5, v14")
    for h in range(4):
        e(f"ds_write_b128 v14, v[{176+8*h}:{179+8*h}] offset:{512*h}")
        e(f"ds_write_b128 v14, v[{180+8*h}:{183+8*h}] offset:{512*h+16}")
    e("s_waitcnt lgkmcnt(0)")
    e("s_barrier")
    e("v_lshlrev_b32 v14, 9, v2")
    e("v_lshl_add_u32 v14, v1, 3, v14")
    for p in range(16):
        e(f"ds_read_b64 v[{16+2*p}:{17+2*p}], v14 offset:{2048*p}")
    e("v_lshlrev_b32 v15, 2, v2")
    for w in range(4):
        e(f"ds_read_b32 v{48+w}, v15 offset:{ML+32*w}")
        e(f"ds_read_b32 v{52+w}, v15 offset:{ML+32*w+16}")
    e("s_waitcnt lgkmcnt(0)")
    e("v_max_f32 v56, v48, v49")
    e("v_max_f32 v57, v50, v51")
    e("v_max_f32 v56, v56, v57")
    for w in range(4):
        e(f"v_sub_f32 v{48+w}, v{48+w}, v56")
        e(f"v_exp_f32 v{48+w}, v{48+w}")
    nop(0)
    e("v_mul_f32 v57, v48, v52")
    for w in range(1, 4): e(f"v_fmac_f32 v57, v{48+w}, v{52+w}")
    e("v_mov_b32 v58, 0")
    e("v_mov_b32 v59, 0")
    for w in range(4):
        for rg in range(4):
            p = w*4+rg
            e(f"v_fmac_f32 v58, v{48+w}, v{16+2*p}")
            e(f"v_fmac_f32 v59, v{48+w}, v{17+2*p}")
    e("s_lshl_b32 s18, s14, 6")
    e("s_add_u32 s18, s18, s15")
    e("v_lshlrev_b32 v14, 4, v2")
    e("v_add_u32 v14, s18, v14")
    e("v_lshlrev_b32 v15, 9, v14")
    e("v_lshl_add_u32 v15, v1, 3, v15")
    e(f"v_add_u32 v15, {WS_OP}, v15")
    e("global_store_dwordx2 v15, v[58:59], s[8:9]")
    e("v_lshlrev_b32 v15, 3, v14")
    e(f"v_add_u32 v15, {WS_ML}, v15")
    e("v_cmp_eq_u32 vcc, 0, v1")
    e("s_and_saveexec_b64 s[20:21], vcc")
    e(f"global_store_dwordx2 v15, v[56:57], s[8:9] offset:0")
    footer(n)

def k3():
    n = "k3_oproj_kernel"
    header(n, 256)
    e("s_load_dwordx2 s[6:7], s[0:1], 32")
    e("s_load_dwordx2 s[8:9], s[0:1], 88")
    e("s_lshr_b32 s14, s2, 4")
    e("s_and_b32 s15, s2, 15")
    e("v_and_b32 v1, 63, v0")
    e("v_lshrrev_b32 v2, 6, v0")
    e("v_and_b32 v3, 3, v0")
    e("v_lshrrev_b32 v4, 2, v0")
    e("s_lshl_b32 s16, s14, 18")
    e("s_lshl_b32 s17, s15, 6")
    e("s_add_u32 s16, s16, s17")
    e("v_lshlrev_b32 v5, 10, v4")
    e("v_lshl_add_u32 v5, v3, 4, v5")
    e("v_add_u32 v5, s16, v5")
    e("s_waitcnt lgkmcnt(0)")
    for i in range(4):
        if i: e("v_add_u32 v5, 0x10000, v5")
        e(f"global_load_dwordx4 v[{16+4*i}:{19+4*i}], v5, s[6:7] nt")
    e("v_lshrrev_b32 v6, 7, v0")
    e("s_lshl_b32 s18, s14, 1")
    e("v_add_u32 v6, s18, v6")
    e("v_and_b32 v7, 127, v0")
    for b in range(2):
        e(f"v_lshlrev_b32 v8, 7, v6")
        e(f"v_add_u32 v8, {WS_ML + b*4096}, v8")
        for k in range(8):
            e(f"global_load_dwordx4 v[{32+4*k}:{35+4*k}], v8, s[8:9] offset:{16*k}")
        e(f"v_lshlrev_b32 v9, 13, v6")
        e(f"v_lshl_add_u32 v9, v7, 2, v9")
        e(f"v_add_u32 v9, {WS_OP + b*32*8192}, v9")
        e(f"v_add_u32 v10, 4096, v9")
        for c in range(16):
            e(f"global_load_dword v{64+c}, v{9 if c < 8 else 10}, s[8:9] offset:{512*(c%8)}")
        e("s_waitcnt vmcnt(16)")
        e("v_max_f32 v80, v32, v34")
        for c in range(2, 16): e(f"v_max_f32 v80, v80, v{32+2*c}")
        for c in range(16):
            e(f"v_sub_f32 v{32+2*c}, v{32+2*c}, v80")
            e(f"v_exp_f32 v{32+2*c}, v{32+2*c}")
        nop(0)
        e("v_mul_f32 v81, v32, v33")
        for c in range(1, 16): e(f"v_fmac_f32 v81, v{32+2*c}, v{33+2*c}")
        e("v_rcp_f32 v81, v81")
        e("s_waitcnt vmcnt(0)")
        e("v_mul_f32 v82, v32, v64")
        for c in range(1, 16): e(f"v_fmac_f32 v82, v{32+2*c}, v{64+c}")
        e("v_mul_f32 v82, v82, v81")
        bf16r(82)
        e("v_lshlrev_b32 v11, 3, v0")
        e(f"ds_write_b32 v11, v82 offset:{4*b}")
    e("s_waitcnt lgkmcnt(0)")
    e("s_barrier")
    e("v_lshlrev_b32 v11, 3, v4")
    for i in range(4):
        e(f"ds_read_b64 v[{64+2*i}:{65+2*i}], v11 offset:{512*i}")
    accs = list(range(80, 96))
    for a in accs: e(f"v_mov_b32 v{a}, 0")
    e("s_waitcnt lgkmcnt(0)")
    for i in range(4):
        for k in range(4):
            unpack(16+4*i+k, 24+8, 25+8)
            e(f"v_fmac_f32 v{80+2*k}, v{64+2*i}, v32")
            e(f"v_fmac_f32 v{81+2*k}, v{64+2*i}, v33")
            e(f"v_fmac_f32 v{88+2*k}, v{65+2*i}, v32")
            e(f"v_fmac_f32 v{89+2*k}, v{65+2*i}, v33")
    reduce_list(accs, (4, 8), 34)
    e("v_lshlrev_b32 v23, 8, v2")
    e("v_lshl_add_u32 v23, v3, 6, v23")
    e("v_add_u32 v23, 4096, v23")
    e("v_cmp_gt_u32 vcc, 4, v1")
    e("s_and_saveexec_b64 s[10:11], vcc")
    for k in range(4):
        e(f"ds_write_b128 v23, v[{80+4*k}:{83+4*k}] offset:{16*k}")
    e("s_mov_b64 exec, s[10:11]")
    e("s_waitcnt lgkmcnt(0)")
    e("s_barrier")
    e("v_cmp_gt_u32 vcc, 64, v0")
    e("s_and_saveexec_b64 s[10:11], vcc")
    e(f"s_cbranch_execz {n}_end")
    e("v_lshrrev_b32 v24, 5, v0")
    e("v_and_b32 v25, 31, v0")
    e("v_lshrrev_b32 v26, 3, v25")
    e("v_and_b32 v27, 7, v25")
    e("v_lshlrev_b32 v28, 6, v26")
    e("v_lshl_add_u32 v28, v24, 5, v28")
    e("v_lshl_add_u32 v28, v27, 2, v28")
    e("v_add_u32 v28, 4096, v28")
    for w in range(4): e(f"ds_read_b32 v{30+w}, v28 offset:{256*w}")
    e("s_waitcnt lgkmcnt(0)")
    e("v_add_f32 v30, v30, v31")
    e("v_add_f32 v32, v32, v33")
    e("v_add_f32 v30, v30, v32")
    e("s_lshl_b32 s16, s14, 12")
    e("s_lshl_b32 s17, s15, 7")
    e("s_add_u32 s16, s16, s17")
    e(f"s_add_u32 s16, s16, {WS_AO}")
    e("v_lshlrev_b32 v28, 11, v24")
    e("v_lshl_add_u32 v28, v25, 2, v28")
    e("v_add_u32 v28, s16, v28")
    e("global_store_dword v28, v30, s[8:9]")
    footer(n)

def k4():
    n = "k4_mlp_kernel"
    header(n, 224)
    e("s_load_dwordx2 s[4:5], s[0:1], 0")
    e("s_load_dwordx2 s[6:7], s[0:1], 48")
    e("s_load_dwordx2 s[10:11], s[0:1], 56")
    e("s_load_dwordx2 s[12:13], s[0:1], 64")
    e("s_load_dwordx2 s[8:9], s[0:1], 88")
    e("v_and_b32 v1, 63, v0")
    e("v_lshrrev_b32 v2, 6, v0")
    e("v_mov_b32 v3, 0")
    e("v_mov_b32 v4, v0")
    e("s_mov_b32 s3, 3584")
    e("v_mul_lo_u32 v5, v4, s3")
    e("v_lshl_add_u32 v5, v3, 4, v5")
    e("s_lshl_b32 s16, s2, 4")
    e("v_add_u32 v5, s16, v5")
    e("v_and_b32 v6, 1, v2")
    e("s_waitcnt lgkmcnt(0)")
    for i in range(2):
        if i: e(f"v_add_u32 v5, {256*3584}, v5")
        e(f"global_load_dwordx4 v[{96+4*i}:{99+4*i}], v5, s[6:7] nt")
        e(f"global_load_dwordx4 v[{112+4*i}:{115+4*i}], v5, s[10:11] nt")
    e("s_lshl_b32 s17, s2, 13")
    e("v_lshlrev_b32 v7, 2, v0")
    e("v_add_u32 v7, s17, v7")
    e("v_add_u32 v8, 4096, v7")
    e("v_add_u32 v9, 8192, v7")
    e("v_add_u32 v10, 12288, v7")
    for i in range(8):
        e(f"global_load_dword v{128+i}, v{7+i//4}, s[12:13] offset:{1024*(i%4)} nt")
    e("v_lshlrev_b32 v11, 10, v6")
    e("v_lshl_add_u32 v11, v1, 4, v11")
    e("global_load_dwordx4 v[12:15], v11, s[4:5]")
    e("v_lshlrev_b32 v11, 11, v6")
    e("v_lshl_add_u32 v11, v1, 5, v11")
    e(f"v_add_u32 v11, {WS_AO}, v11")
    for s in range(16):
        if s: e("v_add_u32 v11, 4096, v11")
        r = 176 + 8*(s%8)
        e(f"global_load_dwordx4 v[{r}:{r+3}], v11, s[8:9]")
        e(f"global_load_dwordx4 v[{r+4}:{r+7}], v11, s[8:9] offset:16")
        if s % 8 == 7:
            e("s_waitcnt vmcnt(0)")
            for k in range(8):
                if s == 7: e(f"v_mov_b32 v{24+k}, v{176+k}")
                for q in range(8):
                    if not (s == 7 and q == 0): e(f"v_add_f32 v{24+k}, v{24+k}, v{176+8*q+k}")
    for k in range(4): unpack(12+k, 16+2*k, 17+2*k)
    xs = list(range(16, 24))
    for k in range(8):
        bf16r(24+k)
        e(f"v_add_f32 v{16+k}, v{16+k}, v{24+k}")
        bf16r(16+k)
    layernorm_wave(xs, 24, 25, 26)
    e("v_lshlrev_b32 v27, 6, v1")
    e("v_lshl_add_u32 v27, v6, 2, v27")
    ln_to_lds(xs, 27)
    e("s_waitcnt lgkmcnt(0)")
    e("s_barrier")
    e("v_lshlrev_b32 v27, 3, v4")
    for i in range(2):
        e(f"ds_read_b64 v[{64+2*i}:{65+2*i}], v27 offset:{2048*i}")
    accs = list(range(144, 176))
    for a in accs: e(f"v_mov_b32 v{a}, 0")
    e("s_waitcnt lgkmcnt(0)")
    for i in range(2):
        for m in range(2):
            for k in range(4):
                unpack(96+16*m+4*i+k, 28, 29)
                e(f"v_fmac_f32 v{144+16*m+2*k}, v{64+2*i}, v28")
                e(f"v_fmac_f32 v{145+16*m+2*k}, v{64+2*i}, v29")
                e(f"v_fmac_f32 v{152+16*m+2*k}, v{65+2*i}, v28")
                e(f"v_fmac_f32 v{153+16*m+2*k}, v{65+2*i}, v29")
    reduce_list(accs, (1, 2, 4, 8), 28)
    e("v_lshlrev_b32 v27, 8, v2")
    e("v_lshl_add_u32 v27, v3, 7, v27")
    e("v_add_u32 v27, 4096, v27")
    e("v_cmp_gt_u32 vcc, 1, v1")
    e("s_and_saveexec_b64 s[14:15], vcc")
    for k in range(8):
        e(f"ds_write_b128 v27, v[{144+4*k}:{147+4*k}] offset:{16*k}")
    e("s_mov_b64 exec, s[14:15]")
    e("s_waitcnt lgkmcnt(0)")
    e("s_barrier")
    e("v_cmp_gt_u32 vcc, 16, v0")
    e("s_and_saveexec_b64 s[14:15], vcc")
    e("v_lshrrev_b32 v24, 3, v0")
    e("v_and_b32 v25, 7, v0")
    e("v_lshrrev_b32 v26, 3, v25")
    e("v_and_b32 v27, 7, v25")
    e("v_lshlrev_b32 v28, 7, v26")
    e("v_lshl_add_u32 v28, v24, 5, v28")
    e("v_lshl_add_u32 v28, v27, 2, v28")
    e("v_add_u32 v28, 4096, v28")
    for w in range(4):
        e(f"ds_read_b32 v{30+w}, v28 offset:{256*w}")
        e(f"ds_read_b32 v{34+w}, v28 offset:{256*w+64}")
    e("s_waitcnt lgkmcnt(0)")
    e("v_add_f32 v30, v30, v31")
    e("v_add_f32 v32, v32, v33")
    e("v_add_f32 v30, v30, v32")
    e("v_add_f32 v34, v34, v35")
    e("v_add_f32 v36, v36, v37")
    e("v_add_f32 v34, v34, v36")
    bf16r(30); bf16r(34)
    e("v_mul_f32 v30, 0xbfb8aa3b, v30")
    e("v_exp_f32 v30, v30")
    nop(0)
    e("v_add_f32 v30, 1.0, v30")
    e("v_rcp_f32 v30, v30")
    nop(0)
    bf16r(30)
    e("v_mul_f32 v30, v30, v34")
    bf16r(30)
    e("v_lshlrev_b32 v28, 3, v25")
    e("v_lshl_add_u32 v28, v24, 2, v28")
    e("ds_write_b32 v28, v30 offset:5120")
    e("s_mov_b64 exec, s[14:15]")
    e("s_waitcnt lgkmcnt(0)")
    e("s_barrier")
    e("v_mov_b32 v27, 0")
    for i in range(8):
        e(f"ds_read_b64 v[{32+2*i}:{33+2*i}], v27 offset:{5120+8*i}")
    for a in range(24, 28): e(f"v_mov_b32 v{a}, 0")
    e("s_waitcnt lgkmcnt(0)")
    for i in range(8):
        unpack(128+i, 28, 29)
        e(f"v_fmac_f32 v24, v{32+2*i}, v28")
        e(f"v_fmac_f32 v25, v{32+2*i}, v29")
        e(f"v_fmac_f32 v26, v{33+2*i}, v28")
        e(f"v_fmac_f32 v27, v{33+2*i}, v29")
    e("s_lshl_b32 s16, s2, 12")
    e(f"s_add_u32 s16, s16, {WS_DP}")
    e("v_lshlrev_b32 v28, 3, v0")
    e("v_add_u32 v28, s16, v28")
    e("global_store_dwordx2 v28, v[24:25], s[8:9]")
    e("global_store_dwordx2 v28, v[26:27], s[8:9] offset:2048")
    footer(n)

def k5():
    n = "k5_final_kernel"
    header(n, 16)
    e("s_load_dwordx2 s[4:5], s[0:1], 0")
    e("s_load_dwordx2 s[6:7], s[0:1], 72")
    e("s_load_dwordx2 s[8:9], s[0:1], 88")
    e("v_and_b32 v1, 63, v0")
    e("v_lshrrev_b32 v2, 6, v0")
    e("s_lshl_b32 s3, s2, 6")
    e("v_add_u32 v3, s3, v1")
    e("s_mov_b32 s10, 229376")
    e("v_mul_lo_u32 v4, v2, s10")
    e("v_lshl_add_u32 v4, v3, 2, v4")
    e(f"v_add_u32 v4, {WS_DP}, v4")
    e("v_lshlrev_b32 v5, 14, v2")
    e("v_lshl_add_u32 v5, v3, 2, v5")
    e(f"v_add_u32 v5, {WS_AO}, v5")
    e("s_waitcnt lgkmcnt(0)")
    for i in range(56):
        if i and i % 1 == 0: pass
        e(f"global_load_dword v{64+i}, v4, s[8:9]")
        e("v_add_u32 v4, 4096, v4")
    for i in range(4):
        e(f"global_load_dword v{44+i}, v5, s[8:9]")
        e("v_add_u32 v5, 4096, v5")
    e("v_lshlrev_b32 v6, 1, v3")
    e("global_load_ushort v48, v6, s[4:5]")
    e("s_waitcnt vmcnt(0)")
    e("v_mov_b32 v16, v64")
    for i in range(1, 56): e(f"v_add_f32 v16, v16, v{64+i}")
    for i in range(1, 4): e(f"v_add_f32 v44, v44, v{44+i}")
    e("v_lshlrev_b32 v7, 3, v0")
    e("ds_write_b64 v7, v[16:17]")
    L.pop()
    e("v_mov_b32 v17, v44")
    e("ds_write_b64 v7, v[16:17]")
    e("s_waitcnt lgkmcnt(0)")
    e("s_barrier")
    e("v_cmp_gt_u32 vcc, 64, v0")
    e("s_and_saveexec_b64 s[10:11], vcc")
    e(f"s_cbranch_execz {n}_end")
    for w in range(4): e(f"ds_read_b64 v[{20+2*w}:{21+2*w}], v7 offset:{512*w}")
    e("s_waitcnt lgkmcnt(0)")
    e("v_add_f32 v20, v20, v22")
    e("v_add_f32 v24, v24, v26")
    e("v_add_f32 v20, v20, v24")
    e("v_add_f32 v21, v21, v23")
    e("v_add_f32 v25, v25, v27")
    e("v_add_f32 v21, v21, v25")
    bf16r(21)
    e("v_lshlrev_b32 v48, 16, v48")
    e("v_add_f32 v21, v21, v48")
    bf16r(21)
    bf16r(20)
    e("v_add_f32 v20, v20, v21")
    e("v_cvt_pk_bf16_f32 v20, v20, v20")
    e("global_store_short v6, v20, s[6:7]")
    footer(n)

hdr = open('sequential_preLN__sliding_block_cached__glu_gated_glu__decode.s.ref').read().split('\n')
top = [l for l in hdr if l.startswith(';') and '@launch' not in l]
out = top[:]
out.append("; @launch kernel=k1_qproj_kernel grid=(128,1,1) block=(256,1,1) lds=8192")
out.append("; @launch kernel=k2_attn_kernel grid=(256,1,1) block=(256,1,1) lds=37120")
out.append("; @launch kernel=k3_oproj_kernel grid=(256,1,1) block=(256,1,1) lds=8192")
out.append("; @launch kernel=k4_mlp_kernel grid=(224,1,1) block=(256,1,1) lds=8192")
out.append("; @launch kernel=k5_final_kernel grid=(16,1,1) block=(256,1,1) lds=2048")
out.append('.amdgcn_target "amdgcn-amd-amdhsa--gfx950"')
out.append(".text")
for f in (k1, k2, k3, k4, k5): f()
out += L
out.append('.section .rodata,"a"')
for name in ("k1_qproj_kernel","k2_attn_kernel","k3_oproj_kernel","k4_mlp_kernel","k5_final_kernel"):
    out += [".p2align 6", f".amdhsa_kernel {name}", "  .amdhsa_next_free_vgpr 256", "  .amdhsa_next_free_sgpr 102",
            "  .amdhsa_accum_offset 256", "  .amdhsa_group_segment_fixed_size 0", "  .amdhsa_kernarg_size 96",
            "  .amdhsa_user_sgpr_count 2", "  .amdhsa_user_sgpr_kernarg_segment_ptr 1",
            "  .amdhsa_system_sgpr_workgroup_id_x 1", ".end_amdhsa_kernel"]
open('sequential_preLN__sliding_block_cached__glu_gated_glu__decode.s','w').write('\n'.join(out)+'\n')
```

```python
import sys
L = []
def e(s): L.append("    " + s)
def lab(s): L.append(s + ":")
def nop(n=1): e(f"s_nop {n}")

WS_Q  = 0x0
WS_ML = 0x8000
WS_OP = 0x10000
WS_AO = 0x90000
WS_DP = 0xA0000

def bf16r(v):
    e(f"v_cvt_pk_bf16_f32 v{v}, v{v}, v{v}")
    e(f"v_lshlrev_b32 v{v}, 16, v{v}")

def dpp(op, v, sh):
    nop(1)
    e(f"{op}_dpp v{v}, v{v}, v{v} row_ror:{sh} row_mask:0xf bank_mask:0xf")

def swap_add(v, t, which):
    e(f"v_mov_b32 v{t}, v{v}")
    nop(1)
    e(f"v_permlane{which}_swap_b32 v{v}, v{t}")
    nop(1)
    e(f"v_add_f32 v{v}, v{v}, v{t}")

def allreduce_sum(v, t):
    for sh in (1, 2, 4, 8): dpp("v_add_f32", v, sh)
    swap_add(v, t, 16); swap_add(v, t, 32)

def reduce_list(accs, rors, t):
    for sh in rors:
        nop(1)
        for a in accs:
            e(f"v_add_f32_dpp v{a}, v{a}, v{a} row_ror:{sh} row_mask:0xf bank_mask:0xf")
    for which in (16, 32):
        for a in accs:
            swap_add(a, t, which)

def header(name, n):
    L.append(f".globl {name}")
    L.append(".p2align 8")
    L.append(f".type {name},@function")
    lab(name)
    e(f"s_cmp_ge_u32 s2, {n}")
    e(f"s_cbranch_scc1 {name}_end")

def footer(name):
    lab(f"{name}_end")
    e("s_endpgm")

def unpack(src, lo, hi):
    e(f"v_lshlrev_b32 v{lo}, 16, v{src}")
    e(f"v_and_b32 v{hi}, 0xffff0000, v{src}")

def layernorm_wave(xs, t0, t1, t2):
    e(f"v_add_f32 v{t0}, v{xs[0]}, v{xs[1]}")
    for k in range(2, 8): e(f"v_add_f32 v{t0}, v{t0}, v{xs[k]}")
    allreduce_sum(t0, t1)
    e(f"v_mul_f32 v{t0}, 0x3b000000, v{t0}")
    e(f"v_sub_f32 v{t1}, v{xs[0]}, v{t0}")
    e(f"v_mul_f32 v{t2}, v{t1}, v{t1}")
    for k in range(1, 8):
        e(f"v_sub_f32 v{t1}, v{xs[k]}, v{t0}")
        e(f"v_fmac_f32 v{t2}, v{t1}, v{t1}")
    allreduce_sum(t2, t1)
    e(f"v_mul_f32 v{t2}, 0x3b000000, v{t2}")
    bf16r(t2)
    e(f"v_add_f32 v{t2}, 0x3727c5ac, v{t2}")
    bf16r(t2)
    e(f"v_sqrt_f32 v{t2}, v{t2}")
    nop(0)
    bf16r(t2)
    e(f"v_rcp_f32 v{t2}, v{t2}")
    bf16r(t0)
    for k in range(8):
        e(f"v_sub_f32 v{xs[k]}, v{xs[k]}, v{t0}")
        bf16r(xs[k])
        e(f"v_mul_f32 v{xs[k]}, v{xs[k]}, v{t2}")
        bf16r(xs[k])

def ln_to_lds(xs, vaddr):
    for k in range(8):
        e(f"ds_write_b32 v{vaddr}, v{xs[k]} offset:{k*8}")

def arrive():
    e("s_load_dwordx2 s[22:23], s[0:1], 80")
    e("v_mov_b32 v250, 0")
    e("v_mov_b32 v251, 1")
    e("v_cmp_eq_u32 vcc, 0, v0")
    e("s_and_saveexec_b64 s[24:25], vcc")
    e("s_waitcnt lgkmcnt(0)")
    e("global_atomic_add v250, v251, s[22:23] sc1")
    e("s_mov_b64 exec, s[24:25]")

def poll(name, n):
    e("s_load_dwordx2 s[22:23], s[0:1], 80")
    e("v_mov_b32 v250, 0")
    e("s_waitcnt lgkmcnt(0)")
    lab(name)
    e("global_load_dword v251, v250, s[22:23] sc1")
    e("s_waitcnt vmcnt(0)")
    e("v_readfirstlane_b32 s24, v251")
    e("s_nop 3")
    e(f"s_cmp_ge_u32 s24, {n}")
    e(f"s_cbranch_scc0 {name}")

def k1():
    n = "k1_qproj_kernel"
    header(n, 128)
    e("s_load_dwordx2 s[4:5], s[0:1], 0")
    e("s_load_dwordx2 s[6:7], s[0:1], 24")
    e("s_load_dwordx2 s[8:9], s[0:1], 88")
    e("v_and_b32 v1, 63, v0")
    e("v_lshrrev_b32 v2, 6, v0")
    e("v_and_b32 v3, 3, v0")
    e("v_lshrrev_b32 v4, 2, v0")
    e("s_lshl_b32 s3, s2, 6")
    e("v_lshlrev_b32 v5, 13, v4")
    e("v_lshl_add_u32 v5, v3, 4, v5")
    e("v_add_u32 v5, s3, v5")
    e("v_and_b32 v6, 1, v2")
    e("v_lshlrev_b32 v7, 10, v6")
    e("v_lshl_add_u32 v7, v1, 4, v7")
    e("s_waitcnt lgkmcnt(0)")
    e("global_load_dwordx4 v[8:11], v7, s[4:5]")
    for i in range(8):
        if i: e(f"v_add_u32 v5, 0x80000, v5")
        e(f"global_load_dwordx4 v[{32+4*i}:{35+4*i}], v5, s[6:7]")
    e("s_waitcnt vmcnt(8)")
    xs = list(range(12, 20))
    for k in range(4): unpack(8+k, 12+2*k, 13+2*k)
    layernorm_wave(xs, 20, 21, 22)
    e("v_lshlrev_b32 v23, 6, v1")
    e("v_lshl_add_u32 v23, v6, 2, v23")
    ln_to_lds(xs, 23)
    e("s_waitcnt lgkmcnt(0)")
    e("s_barrier")
    e("v_lshlrev_b32 v23, 3, v4")
    for i in range(8):
        e(f"ds_read_b64 v[{64+2*i}:{65+2*i}], v23 offset:{512*i}")
    accs = list(range(80, 96))
    for a in accs: e(f"v_mov_b32 v{a}, 0")
    e("s_waitcnt lgkmcnt(0)")
    for i in range(8):
        e(f"s_waitcnt vmcnt({7-i})")
        for k in range(4):
            unpack(32+4*i+k, 24, 25)
            e(f"v_fmac_f32 v{80+2*k}, v{64+2*i}, v24")
            e(f"v_fmac_f32 v{81+2*k}, v{64+2*i}, v25")
            e(f"v_fmac_f32 v{88+2*k}, v{65+2*i}, v24")
            e(f"v_fmac_f32 v{89+2*k}, v{65+2*i}, v25")
    reduce_list(accs, (4, 8), 24)
    e("v_lshlrev_b32 v23, 8, v2")
    e("v_lshl_add_u32 v23, v3, 6, v23")
    e("v_add_u32 v23, 4096, v23")
    e("v_cmp_gt_u32 vcc, 4, v1")
    e("s_and_saveexec_b64 s[10:11], vcc")
    for k in range(4):
        e(f"ds_write_b128 v23, v[{80+4*k}:{83+4*k}] offset:{16*k}")
    e("s_mov_b64 exec, s[10:11]")
    e("s_waitcnt lgkmcnt(0)")
    e("s_barrier")
    e("v_cmp_gt_u32 vcc, 64, v0")
    e("s_and_saveexec_b64 s[10:11], vcc")
    e(f"s_cbranch_execz {n}_end")
    e("v_lshrrev_b32 v24, 5, v0")
    e("v_and_b32 v25, 31, v0")
    e("v_lshrrev_b32 v26, 3, v25")
    e("v_and_b32 v27, 7, v25")
    e("v_lshlrev_b32 v28, 6, v26")
    e("v_lshl_add_u32 v28, v24, 5, v28")
    e("v_lshl_add_u32 v28, v27, 2, v28")
    e("v_add_u32 v28, 4096, v28")
    for w in range(4): e(f"ds_read_b32 v{30+w}, v28 offset:{256*w}")
    e("s_waitcnt lgkmcnt(0)")
    e("v_add_f32 v30, v30, v31")
    e("v_add_f32 v32, v32, v33")
    e("v_add_f32 v30, v30, v32")
    e("v_cvt_pk_bf16_f32 v30, v30, v30")
    e("v_lshlrev_b32 v28, 13, v24")
    e("v_lshl_add_u32 v28, v25, 1, v28")
    e("v_add_u32 v28, s3, v28")
    e(f"global_store_short v28, v30, s[8:9] offset:{WS_Q}")
    footer(n)

def k2():
    n = "k2_attn_kernel"
    ACC, PB, ML = 0, 32768, 36864
    header(n, 256)
    e("s_load_dwordx2 s[4:5], s[0:1], 8")
    e("s_load_dwordx2 s[6:7], s[0:1], 16")
    e("s_load_dwordx2 s[8:9], s[0:1], 88")
    e("s_lshr_b32 s14, s2, 4")
    e("s_and_b32 s15, s2, 15")
    e("s_lshl_b32 s16, s14, 23")
    e("s_lshl_b32 s17, s15, 16")
    e("s_add_u32 s16, s16, s17")
    e(f"s_add_u32 s16, s16, {28672*256}")
    e("v_and_b32 v1, 63, v0")
    e("v_lshrrev_b32 v2, 6, v0")
    e("v_and_b32 v11, 15, v1")
    e("v_lshrrev_b32 v12, 4, v1")
    e("v_lshlrev_b32 v3, 14, v2")
    e("v_lshl_add_u32 v3, v11, 8, v3")
    e("v_lshl_add_u32 v3, v12, 4, v3")
    e("v_add_u32 v4, 4096, v3")
    e("v_add_u32 v5, 8192, v3")
    e("v_add_u32 v6, 12288, v3")
    e("v_lshlrev_b32 v7, 14, v2")
    e("v_lshl_add_u32 v7, v12, 8, v7")
    e("v_lshl_add_u32 v7, v11, 4, v7")
    e("v_add_u32 v8, 4096, v7")
    e("v_add_u32 v9, 8192, v7")
    e("v_add_u32 v10, 12288, v7")
    e("s_waitcnt lgkmcnt(0)")
    e("s_add_u32 s10, s4, s16")
    e("s_addc_u32 s11, s5, 0")
    e("s_add_u32 s12, s6, s16")
    e("s_addc_u32 s13, s7, 0")
    for t in range(4):
        for i in range(4):
            r = 16 + (t*4+i)*4
            e(f"global_load_dwordx4 v[{r}:{r+3}], v{3+t}, s[10:11] offset:{64*i}")
    for r in range(144, 160): e(f"v_mov_b32 v{r}, 0")
    e("s_lshl_b32 s18, s14, 10")
    e("v_lshlrev_b32 v13, 8, v11")
    e("v_lshl_add_u32 v13, v12, 4, v13")
    e("v_add_u32 v13, s18, v13")
    e("v_cmp_gt_u32 vcc, 4, v11")
    e("s_and_saveexec_b64 s[20:21], vcc")
    for i in range(4):
        e(f"global_load_dwordx4 v[{144+4*i}:{147+4*i}], v13, s[8:9] offset:{WS_Q+64*i}")
    e("s_mov_b64 exec, s[20:21]")
    for g in range(4):
        for i in range(4):
            r = 80 + (g*4+i)*4
            e(f"global_load_dwordx4 v[{r}:{r+3}], v{7+g}, s[12:13] offset:{1024*i}")
    for r in range(160, 176): e(f"v_mov_b32 v{r}, 0")
    e("s_waitcnt vmcnt(16)")
    nop(1)
    for t in range(4):
        for i in range(4):
            r = 16 + (t*4+i)*4
            e(f"v_mfma_f32_16x16x32_bf16 v[{160+4*t}:{163+4*t}], v[{144+4*i}:{147+4*i}], v[{r}:{r+3}], v[{160+4*t}:{163+4*t}]")
    nop(15)
    for r in range(160, 176):
        bf16r(r)
        e(f"v_mul_f32 v{r}, 0x3db504f3, v{r}")
        bf16r(r)
        e(f"v_mul_f32 v{r}, 0x3fb8aa3b, v{r}")
    for h in range(4):
        e(f"v_max_f32 v{208+h}, v{160+h}, v{164+h}")
        e(f"v_max_f32 v{216}, v{168+h}, v{172+h}")
        e(f"v_max_f32 v{208+h}, v{208+h}, v216")
    for sh in (1, 2, 4, 8):
        nop(1)
        for h in range(4):
            e(f"v_max_f32_dpp v{208+h}, v{208+h}, v{208+h} row_ror:{sh} row_mask:0xf bank_mask:0xf")
    for t in range(4):
        for h in range(4):
            r = 160+4*t+h
            e(f"v_sub_f32 v{r}, v{r}, v{208+h}")
            e(f"v_exp_f32 v{r}, v{r}")
    nop(0)
    for h in range(4):
        e(f"v_add_f32 v{212+h}, v{160+h}, v{164+h}")
        e(f"v_add_f32 v216, v{168+h}, v{172+h}")
        e(f"v_add_f32 v{212+h}, v{212+h}, v216")
    for sh in (1, 2, 4, 8):
        nop(1)
        for h in range(4):
            e(f"v_add_f32_dpp v{212+h}, v{212+h}, v{212+h} row_ror:{sh} row_mask:0xf bank_mask:0xf")
    e("v_lshlrev_b32 v13, 10, v2")
    e("v_lshl_add_u32 v14, v1, 4, v13")
    e(f"v_add_u32 v14, {PB}, v14")
    e("v_cmp_gt_u32 vcc, 16, v1")
    e("s_and_saveexec_b64 s[20:21], vcc")
    for t in range(4):
        e(f"ds_write_b128 v14, v[{160+4*t}:{163+4*t}] offset:{256*t}")
    e("v_cmp_eq_u32 vcc, 0, v1")
    e("s_and_b64 exec, exec, vcc")
    e("v_lshlrev_b32 v15, 5, v2")
    e(f"v_add_u32 v15, {ML}, v15")
    e("ds_write_b128 v15, v[208:211]")
    e("ds_write_b128 v15, v[212:215] offset:16")
    e("s_mov_b64 exec, s[20:21]")
    e("v_lshl_add_u32 v14, v12, 4, v13")
    e(f"v_add_u32 v14, {PB}, v14")
    for i in range(16):
        e(f"ds_read_b128 v[{16+4*i}:{19+4*i}], v14 offset:{64*i}")
    for r in range(176, 208): e(f"v_mov_b32 v{r}, 0")
    e("s_waitcnt lgkmcnt(0)")
    for i in range(16):
        e(f"s_waitcnt vmcnt({15-i})")
        for k in range(4):
            unpack(80+4*i+k, 216+2*k, 217+2*k)
        for h in range(4):
            for j in range(8):
                e(f"v_fmac_f32 v{176+8*h+j}, v{16+4*i+h}, v{216+j}")
    e("v_lshlrev_b32 v14, 2, v2")
    e("v_add_u32 v14, v14, v12")
    e("v_lshlrev_b32 v14, 11, v14")
    e("v_lshl_add_u32 v14, v11, 5, v14")
    for h in range(4):
        e(f"ds_write_b128 v14, v[{176+8*h}:{179+8*h}] offset:{512*h}")
        e(f"ds_write_b128 v14, v[{180+8*h}:{183+8*h}] offset:{512*h+16}")
    e("s_waitcnt lgkmcnt(0)")
    e("s_barrier")
    e("v_lshlrev_b32 v14, 9, v2")
    e("v_lshl_add_u32 v14, v1, 3, v14")
    for p in range(16):
        e(f"ds_read_b64 v[{16+2*p}:{17+2*p}], v14 offset:{2048*p}")
    e("v_lshlrev_b32 v15, 2, v2")
    for w in range(4):
        e(f"ds_read_b32 v{48+w}, v15 offset:{ML+32*w}")
        e(f"ds_read_b32 v{52+w}, v15 offset:{ML+32*w+16}")
    e("s_waitcnt lgkmcnt(0)")
    e("v_max_f32 v56, v48, v49")
    e("v_max_f32 v57, v50, v51")
    e("v_max_f32 v56, v56, v57")
    for w in range(4):
        e(f"v_sub_f32 v{48+w}, v{48+w}, v56")
        e(f"v_exp_f32 v{48+w}, v{48+w}")
    nop(0)
    e("v_mul_f32 v57, v48, v52")
    for w in range(1, 4): e(f"v_fmac_f32 v57, v{48+w}, v{52+w}")
    e("v_mov_b32 v58, 0")
    e("v_mov_b32 v59, 0")
    for w in range(4):
        for rg in range(4):
            p = w*4+rg
            e(f"v_fmac_f32 v58, v{48+w}, v{16+2*p}")
            e(f"v_fmac_f32 v59, v{48+w}, v{17+2*p}")
    e("s_lshl_b32 s18, s14, 6")
    e("s_add_u32 s18, s18, s15")
    e("v_lshlrev_b32 v14, 4, v2")
    e("v_add_u32 v14, s18, v14")
    e("v_lshlrev_b32 v15, 9, v14")
    e("v_lshl_add_u32 v15, v1, 3, v15")
    e(f"v_add_u32 v15, {WS_OP}, v15")
    e("global_store_dwordx2 v15, v[58:59], s[8:9]")
    e("v_lshlrev_b32 v15, 3, v14")
    e(f"v_add_u32 v15, {WS_ML}, v15")
    e("v_cmp_eq_u32 vcc, 0, v1")
    e("s_and_saveexec_b64 s[20:21], vcc")
    e(f"global_store_dwordx2 v15, v[56:57], s[8:9] offset:0")
    footer(n)

def k3():
    n = "k3_oproj_kernel"
    header(n, 256)
    e("s_load_dwordx2 s[6:7], s[0:1], 32")
    e("s_load_dwordx2 s[8:9], s[0:1], 88")
    e("s_lshr_b32 s14, s2, 4")
    e("s_and_b32 s15, s2, 15")
    e("v_and_b32 v1, 63, v0")
    e("v_lshrrev_b32 v2, 6, v0")
    e("v_and_b32 v3, 3, v0")
    e("v_lshrrev_b32 v4, 2, v0")
    e("s_lshl_b32 s16, s14, 18")
    e("s_lshl_b32 s17, s15, 6")
    e("s_add_u32 s16, s16, s17")
    e("v_lshlrev_b32 v5, 10, v4")
    e("v_lshl_add_u32 v5, v3, 4, v5")
    e("v_add_u32 v5, s16, v5")
    e("s_waitcnt lgkmcnt(0)")
    for i in range(4):
        if i: e("v_add_u32 v5, 0x10000, v5")
        e(f"global_load_dwordx4 v[{16+4*i}:{19+4*i}], v5, s[6:7]")
    e("v_lshrrev_b32 v6, 7, v0")
    e("s_lshl_b32 s18, s14, 1")
    e("v_add_u32 v6, s18, v6")
    e("v_and_b32 v7, 127, v0")
    for b in range(2):
        e(f"v_lshlrev_b32 v8, 7, v6")
        e(f"v_add_u32 v8, {WS_ML + b*4096}, v8")
        for k in range(8):
            e(f"global_load_dwordx4 v[{32+4*k}:{35+4*k}], v8, s[8:9] offset:{16*k}")
        e(f"v_lshlrev_b32 v9, 13, v6")
        e(f"v_lshl_add_u32 v9, v7, 2, v9")
        e(f"v_add_u32 v9, {WS_OP + b*32*8192}, v9")
        e(f"v_add_u32 v10, 4096, v9")
        for c in range(16):
            e(f"global_load_dword v{64+c}, v{9 if c < 8 else 10}, s[8:9] offset:{512*(c%8)}")
        e("s_waitcnt vmcnt(16)")
        e("v_max_f32 v80, v32, v34")
        for c in range(2, 16): e(f"v_max_f32 v80, v80, v{32+2*c}")
        for c in range(16):
            e(f"v_sub_f32 v{32+2*c}, v{32+2*c}, v80")
            e(f"v_exp_f32 v{32+2*c}, v{32+2*c}")
        nop(0)
        e("v_mul_f32 v81, v32, v33")
        for c in range(1, 16): e(f"v_fmac_f32 v81, v{32+2*c}, v{33+2*c}")
        e("v_rcp_f32 v81, v81")
        e("s_waitcnt vmcnt(0)")
        e("v_mul_f32 v82, v32, v64")
        for c in range(1, 16): e(f"v_fmac_f32 v82, v{32+2*c}, v{64+c}")
        e("v_mul_f32 v82, v82, v81")
        bf16r(82)
        e("v_lshlrev_b32 v11, 3, v0")
        e(f"ds_write_b32 v11, v82 offset:{4*b}")
    e("s_waitcnt lgkmcnt(0)")
    e("s_barrier")
    e("v_lshlrev_b32 v11, 3, v4")
    for i in range(4):
        e(f"ds_read_b64 v[{64+2*i}:{65+2*i}], v11 offset:{512*i}")
    accs = list(range(80, 96))
    for a in accs: e(f"v_mov_b32 v{a}, 0")
    e("s_waitcnt lgkmcnt(0)")
    for i in range(4):
        for k in range(4):
            unpack(16+4*i+k, 24+8, 25+8)
            e(f"v_fmac_f32 v{80+2*k}, v{64+2*i}, v32")
            e(f"v_fmac_f32 v{81+2*k}, v{64+2*i}, v33")
            e(f"v_fmac_f32 v{88+2*k}, v{65+2*i}, v32")
            e(f"v_fmac_f32 v{89+2*k}, v{65+2*i}, v33")
    reduce_list(accs, (4, 8), 34)
    e("v_lshlrev_b32 v23, 8, v2")
    e("v_lshl_add_u32 v23, v3, 6, v23")
    e("v_add_u32 v23, 4096, v23")
    e("v_cmp_gt_u32 vcc, 4, v1")
    e("s_and_saveexec_b64 s[10:11], vcc")
    for k in range(4):
        e(f"ds_write_b128 v23, v[{80+4*k}:{83+4*k}] offset:{16*k}")
    e("s_mov_b64 exec, s[10:11]")
    e("s_waitcnt lgkmcnt(0)")
    e("s_barrier")
    e("v_cmp_gt_u32 vcc, 64, v0")
    e("s_and_saveexec_b64 s[10:11], vcc")
    e(f"s_cbranch_execz {n}_end")
    e("v_lshrrev_b32 v24, 5, v0")
    e("v_and_b32 v25, 31, v0")
    e("v_lshrrev_b32 v26, 3, v25")
    e("v_and_b32 v27, 7, v25")
    e("v_lshlrev_b32 v28, 6, v26")
    e("v_lshl_add_u32 v28, v24, 5, v28")
    e("v_lshl_add_u32 v28, v27, 2, v28")
    e("v_add_u32 v28, 4096, v28")
    for w in range(4): e(f"ds_read_b32 v{30+w}, v28 offset:{256*w}")
    e("s_waitcnt lgkmcnt(0)")
    e("v_add_f32 v30, v30, v31")
    e("v_add_f32 v32, v32, v33")
    e("v_add_f32 v30, v30, v32")
    e("s_lshl_b32 s16, s14, 12")
    e("s_lshl_b32 s17, s15, 7")
    e("s_add_u32 s16, s16, s17")
    e(f"s_add_u32 s16, s16, {WS_AO}")
    e("v_lshlrev_b32 v28, 11, v24")
    e("v_lshl_add_u32 v28, v25, 2, v28")
    e("v_add_u32 v28, s16, v28")
    e("global_store_dword v28, v30, s[8:9]")
    footer(n)

def k4():
    n = "k4_mlp_kernel"
    header(n, 112)
    e("s_load_dwordx2 s[4:5], s[0:1], 0")
    e("s_load_dwordx2 s[6:7], s[0:1], 48")
    e("s_load_dwordx2 s[10:11], s[0:1], 56")
    e("s_load_dwordx2 s[12:13], s[0:1], 64")
    e("s_load_dwordx2 s[8:9], s[0:1], 88")
    e("v_and_b32 v1, 63, v0")
    e("v_lshrrev_b32 v2, 6, v0")
    e("v_and_b32 v3, 1, v0")
    e("v_lshrrev_b32 v4, 1, v0")
    e("s_mov_b32 s3, 3584")
    e("v_mul_lo_u32 v5, v4, s3")
    e("v_lshl_add_u32 v5, v3, 4, v5")
    e("s_lshl_b32 s16, s2, 5")
    e("v_add_u32 v5, s16, v5")
    e("v_and_b32 v6, 1, v2")
    e("s_waitcnt lgkmcnt(0)")
    for i in range(4):
        if i: e(f"v_add_u32 v5, {128*3584}, v5")
        e(f"global_load_dwordx4 v[{96+4*i}:{99+4*i}], v5, s[6:7]")
        e(f"global_load_dwordx4 v[{112+4*i}:{115+4*i}], v5, s[10:11]")
    e("s_lshl_b32 s17, s2, 14")
    e("v_lshlrev_b32 v7, 2, v0")
    e("v_add_u32 v7, s17, v7")
    e("v_add_u32 v8, 4096, v7")
    e("v_add_u32 v9, 8192, v7")
    e("v_add_u32 v10, 12288, v7")
    for i in range(16):
        e(f"global_load_dword v{128+i}, v{7+i//4}, s[12:13] offset:{1024*(i%4)}")
    e("v_lshlrev_b32 v11, 10, v6")
    e("v_lshl_add_u32 v11, v1, 4, v11")
    e("global_load_dwordx4 v[12:15], v11, s[4:5]")
    e("v_lshlrev_b32 v11, 11, v6")
    e("v_lshl_add_u32 v11, v1, 5, v11")
    e(f"v_add_u32 v11, {WS_AO}, v11")
    for s in range(16):
        if s: e("v_add_u32 v11, 4096, v11")
        e(f"global_load_dwordx4 v[{32+8*(s%4)}:{35+8*(s%4)}], v11, s[8:9]")
        e(f"global_load_dwordx4 v[{36+8*(s%4)}:{39+8*(s%4)}], v11, s[8:9] offset:16")
        if s % 4 == 3:
            e("s_waitcnt vmcnt(0)")
            for k in range(8):
                if s == 3:
                    e(f"v_add_f32 v{24+k}, v{32+k}, v{40+k}")
                else:
                    e(f"v_add_f32 v{24+k}, v{24+k}, v{32+k}")
                    e(f"v_add_f32 v{24+k}, v{24+k}, v{40+k}")
                e(f"v_add_f32 v{48+k}, v{48+k}, v{56+k}")
                e(f"v_add_f32 v{24+k}, v{24+k}, v{48+k}")
    for k in range(4): unpack(12+k, 16+2*k, 17+2*k)
    xs = list(range(16, 24))
    for k in range(8):
        bf16r(24+k)
        e(f"v_add_f32 v{16+k}, v{16+k}, v{24+k}")
        bf16r(16+k)
    layernorm_wave(xs, 24, 25, 26)
    e("v_lshlrev_b32 v27, 6, v1")
    e("v_lshl_add_u32 v27, v6, 2, v27")
    ln_to_lds(xs, 27)
    e("s_waitcnt lgkmcnt(0)")
    e("s_barrier")
    e("v_lshlrev_b32 v27, 3, v4")
    for i in range(4):
        e(f"ds_read_b64 v[{64+2*i}:{65+2*i}], v27 offset:{1024*i}")
    accs = list(range(144, 176))
    for a in accs: e(f"v_mov_b32 v{a}, 0")
    e("s_waitcnt lgkmcnt(0)")
    for i in range(4):
        for m in range(2):
            for k in range(4):
                unpack(96+16*m+4*i+k, 28, 29)
                e(f"v_fmac_f32 v{144+16*m+2*k}, v{64+2*i}, v28")
                e(f"v_fmac_f32 v{145+16*m+2*k}, v{64+2*i}, v29")
                e(f"v_fmac_f32 v{152+16*m+2*k}, v{65+2*i}, v28")
                e(f"v_fmac_f32 v{153+16*m+2*k}, v{65+2*i}, v29")
    reduce_list(accs, (2, 4, 8), 28)
    e("v_lshlrev_b32 v27, 8, v2")
    e("v_lshl_add_u32 v27, v3, 7, v27")
    e("v_add_u32 v27, 4096, v27")
    e("v_cmp_gt_u32 vcc, 2, v1")
    e("s_and_saveexec_b64 s[14:15], vcc")
    for k in range(8):
        e(f"ds_write_b128 v27, v[{144+4*k}:{147+4*k}] offset:{16*k}")
    e("s_mov_b64 exec, s[14:15]")
    e("s_waitcnt lgkmcnt(0)")
    e("s_barrier")
    e("v_cmp_gt_u32 vcc, 32, v0")
    e("s_and_saveexec_b64 s[14:15], vcc")
    e("v_lshrrev_b32 v24, 4, v0")
    e("v_and_b32 v25, 15, v0")
    e("v_lshrrev_b32 v26, 3, v25")
    e("v_and_b32 v27, 7, v25")
    e("v_lshlrev_b32 v28, 7, v26")
    e("v_lshl_add_u32 v28, v24, 5, v28")
    e("v_lshl_add_u32 v28, v27, 2, v28")
    e("v_add_u32 v28, 4096, v28")
    for w in range(4):
        e(f"ds_read_b32 v{30+w}, v28 offset:{256*w}")
        e(f"ds_read_b32 v{34+w}, v28 offset:{256*w+64}")
    e("s_waitcnt lgkmcnt(0)")
    e("v_add_f32 v30, v30, v31")
    e("v_add_f32 v32, v32, v33")
    e("v_add_f32 v30, v30, v32")
    e("v_add_f32 v34, v34, v35")
    e("v_add_f32 v36, v36, v37")
    e("v_add_f32 v34, v34, v36")
    bf16r(30); bf16r(34)
    e("v_mul_f32 v30, 0xbfb8aa3b, v30")
    e("v_exp_f32 v30, v30")
    nop(0)
    e("v_add_f32 v30, 1.0, v30")
    e("v_rcp_f32 v30, v30")
    nop(0)
    bf16r(30)
    e("v_mul_f32 v30, v30, v34")
    bf16r(30)
    e("v_lshlrev_b32 v28, 3, v25")
    e("v_lshl_add_u32 v28, v24, 2, v28")
    e("ds_write_b32 v28, v30 offset:5120")
    e("s_mov_b64 exec, s[14:15]")
    e("s_waitcnt lgkmcnt(0)")
    e("s_barrier")
    e("v_mov_b32 v27, 0")
    for i in range(16):
        e(f"ds_read_b64 v[{32+2*i}:{33+2*i}], v27 offset:{5120+8*i}")
    for a in range(24, 28): e(f"v_mov_b32 v{a}, 0")
    e("s_waitcnt lgkmcnt(0)")
    for i in range(16):
        unpack(128+i, 28, 29)
        e(f"v_fmac_f32 v24, v{32+2*i}, v28")
        e(f"v_fmac_f32 v25, v{32+2*i}, v29")
        e(f"v_fmac_f32 v26, v{33+2*i}, v28")
        e(f"v_fmac_f32 v27, v{33+2*i}, v29")
    e("s_lshl_b32 s16, s2, 12")
    e(f"s_add_u32 s16, s16, {WS_DP}")
    e("v_lshlrev_b32 v28, 3, v0")
    e("v_add_u32 v28, s16, v28")
    e("global_store_dwordx2 v28, v[24:25], s[8:9]")
    e("global_store_dwordx2 v28, v[26:27], s[8:9] offset:2048")
    footer(n)

def k5():
    n = "k5_final_kernel"
    header(n, 16)
    e("s_load_dwordx2 s[4:5], s[0:1], 0")
    e("s_load_dwordx2 s[6:7], s[0:1], 72")
    e("s_load_dwordx2 s[8:9], s[0:1], 88")
    e("v_and_b32 v1, 63, v0")
    e("v_lshrrev_b32 v2, 6, v0")
    e("s_lshl_b32 s3, s2, 6")
    e("v_add_u32 v3, s3, v1")
    e("s_mov_b32 s10, 114688")
    e("v_mul_lo_u32 v4, v2, s10")
    e("v_lshl_add_u32 v4, v3, 2, v4")
    e(f"v_add_u32 v4, {WS_DP}, v4")
    e("v_lshlrev_b32 v5, 14, v2")
    e("v_lshl_add_u32 v5, v3, 2, v5")
    e(f"v_add_u32 v5, {WS_AO}, v5")
    e("s_waitcnt lgkmcnt(0)")
    for i in range(28):
        if i and i % 1 == 0: pass
        e(f"global_load_dword v{16+i}, v4, s[8:9]")
        e("v_add_u32 v4, 4096, v4")
    for i in range(4):
        e(f"global_load_dword v{44+i}, v5, s[8:9]")
        e("v_add_u32 v5, 4096, v5")
    e("v_lshlrev_b32 v6, 1, v3")
    e("global_load_ushort v48, v6, s[4:5]")
    e("s_waitcnt vmcnt(0)")
    for i in range(1, 28): e(f"v_add_f32 v16, v16, v{16+i}")
    for i in range(1, 4): e(f"v_add_f32 v44, v44, v{44+i}")
    e("v_lshlrev_b32 v7, 3, v0")
    e("ds_write_b64 v7, v[16:17]")
    L.pop()
    e("v_mov_b32 v17, v44")
    e("ds_write_b64 v7, v[16:17]")
    e("s_waitcnt lgkmcnt(0)")
    e("s_barrier")
    e("v_cmp_gt_u32 vcc, 64, v0")
    e("s_and_saveexec_b64 s[10:11], vcc")
    e(f"s_cbranch_execz {n}_end")
    for w in range(4): e(f"ds_read_b64 v[{20+2*w}:{21+2*w}], v7 offset:{512*w}")
    e("s_waitcnt lgkmcnt(0)")
    e("v_add_f32 v20, v20, v22")
    e("v_add_f32 v24, v24, v26")
    e("v_add_f32 v20, v20, v24")
    e("v_add_f32 v21, v21, v23")
    e("v_add_f32 v25, v25, v27")
    e("v_add_f32 v21, v21, v25")
    bf16r(21)
    e("v_lshlrev_b32 v48, 16, v48")
    e("v_add_f32 v21, v21, v48")
    bf16r(21)
    bf16r(20)
    e("v_add_f32 v20, v20, v21")
    e("v_cvt_pk_bf16_f32 v20, v20, v20")
    e("global_store_short v6, v20, s[6:7]")
    footer(n)

hdr = open('sequential_preLN__sliding_block_cached__glu_gated_glu__decode.s.ref').read().split('\n')
top = [l for l in hdr if l.startswith(';') and '@launch' not in l]
out = top[:]
out.append("; @launch kernel=k1_qproj_kernel grid=(128,1,1) block=(256,1,1) lds=8192")
out.append("; @launch kernel=k2_attn_kernel grid=(256,1,1) block=(256,1,1) lds=37120")
out.append("; @launch kernel=k3_oproj_kernel grid=(256,1,1) block=(256,1,1) lds=8192")
out.append("; @launch kernel=k4_mlp_kernel grid=(112,1,1) block=(256,1,1) lds=8192")
out.append("; @launch kernel=k5_final_kernel grid=(16,1,1) block=(256,1,1) lds=2048")
out.append('.amdgcn_target "amdgcn-amd-amdhsa--gfx950"')
out.append(".text")
for f in (k1, k2, k3, k4, k5): f()
out += L
out.append('.section .rodata,"a"')
for name in ("k1_qproj_kernel","k2_attn_kernel","k3_oproj_kernel","k4_mlp_kernel","k5_final_kernel"):
    out += [".p2align 6", f".amdhsa_kernel {name}", "  .amdhsa_next_free_vgpr 256", "  .amdhsa_next_free_sgpr 102",
            "  .amdhsa_accum_offset 256", "  .amdhsa_group_segment_fixed_size 0", "  .amdhsa_kernarg_size 96",
            "  .amdhsa_user_sgpr_count 2", "  .amdhsa_user_sgpr_kernarg_segment_ptr 1",
            "  .amdhsa_system_sgpr_workgroup_id_x 1", ".end_amdhsa_kernel"]
open('sequential_preLN__sliding_block_cached__glu_gated_glu__decode.s','w').write('\n'.join(out)+'\n')
```
